```python
import torch

def _softmax(x, axis=-1):
    return torch.softmax(x, dim=axis)
def _gelu(x):
    return torch.nn.functional.gelu(x, approximate="tanh")
def _silu(x):
    return torch.nn.functional.silu(x)
def _sigmoid(x):
    return torch.sigmoid(x)
def _layernorm(x, axis=-1, eps=1e-5):
    m = x.mean(dim=axis, keepdim=True)
    v = x.var(dim=axis, keepdim=True, unbiased=False)
    return (x - m) / torch.sqrt(v + eps)
def _scatter_add(tgt, idx, src, axis=0):
    return tgt.clone().index_add_(axis, idx, src)
def _segment_sum(src, seg, n):
    out = torch.zeros((n,) + src.shape[1:], dtype=src.dtype)
    return out.index_add_(0, seg, src)
def _pad(x, pw):
    flat = tuple(v for pair in reversed(pw) for v in pair)
    return torch.nn.functional.pad(x, flat)

kernel_name = 'gated_mix__compressed_kv_cla__linear_kernel_hedgehog__prompt'

def setup_inputs():

    _w = (lambda a: (lambda t: t.to(torch.bfloat16) if t.is_floating_point() else t)(torch.as_tensor(a)))
    def _A_setup():
        B, H, Sq, Sk, D, M = 1, 32, 2048, 2048, 128, 512
        Dc = 4 * D
        return {
            "x": _w((lambda *s: torch.randn(*s, dtype=torch.bfloat16) * 0.05)(B, Sq, M)),
            "c_kv": _w((lambda *s: torch.randn(*s, dtype=torch.bfloat16) * 0.8)(B, Sk, Dc)),
            "w_q": _w((lambda *s: torch.randn(*s, dtype=torch.bfloat16) * 6.4)(M, H, D) * (M ** -0.5)),
            "w_uk": _w((lambda *s: torch.randn(*s, dtype=torch.bfloat16) * 6.4)(Dc, H, D) * (Dc ** -0.5)),
            "w_uv": _w((lambda *s: torch.randn(*s, dtype=torch.bfloat16) * 0.8)(Dc, H, D) * (Dc ** -0.5)),
            "w_o": _w((lambda *s: torch.randn(*s, dtype=torch.bfloat16) * 0.8)(H, D, M) * ((H * D) ** -0.5)),
        }
    _A_in = _A_setup()

    def _B_setup():
        B, S, D, H = 1, 2048, 512, 32
        Dh = D // H
        return {
            "x": _w((lambda *s: torch.randn(*s, dtype=torch.bfloat16) * 0.05)(B, S, D)),
            "wqkv": _w((lambda *s: torch.randn(*s, dtype=torch.bfloat16) * 1.6)(D, 3 * D)),
            "w_phi": _w((lambda *s: torch.randn(*s, dtype=torch.bfloat16) * 1.6)(H, Dh, Dh) * (Dh ** -0.5)),
            "wo": _w((lambda *s: torch.randn(*s, dtype=torch.bfloat16) * 0.05)(D, D)),
        }
    _B_in = _B_setup()

    return {
        "A_x": _A_in["x"],
        "A_c_kv": _A_in["c_kv"],
        "A_w_q": _A_in["w_q"],
        "A_w_uk": _A_in["w_uk"],
        "A_w_uv": _A_in["w_uv"],
        "A_w_o": _A_in["w_o"],
        "B_x": _B_in["x"],
        "B_wqkv": _B_in["wqkv"],
        "B_w_phi": _B_in["w_phi"],
        "B_wo": _B_in["wo"],
        "gate_w": _w((lambda *s: torch.randn(*s, dtype=torch.bfloat16) * 0.05)(512) * 16.0),
    }

def reference(A_x, A_c_kv, A_w_q, A_w_uk, A_w_uv, A_w_o, B_x, B_wqkv, B_w_phi, B_wo, gate_w):
    def _A_ref(x, c_kv, w_q, w_uk, w_uv, w_o):
        B, Sq, M = x.shape[0], x.shape[1], x.shape[2]
        Sk = c_kv.shape[1]
        H, D = w_q.shape[1], w_q.shape[2]
        q = torch.einsum("bqm,mhd->bhqd", x, w_q)
        k = torch.einsum("bkc,chd->bhkd", c_kv, w_uk)
        v = torch.einsum("bkc,chd->bhkd", c_kv, w_uv)
        scores = torch.einsum("bhqd,bhkd->bhqk", q, k) * (D ** -0.5)
        off = Sk - Sq
        qi = torch.arange(Sq)[:, None]
        kj = torch.arange(Sk)[None, :]
        cmask = kj <= (qi + off)
        scores = torch.where(cmask[None, None], scores, -1e9)
        p = _softmax(scores, axis=-1)
        ctx = torch.einsum("bhqk,bhkd->bhqd", p, v)
        return torch.einsum("bhqd,hdm->bqm", ctx, w_o)

    def _B_ref(x, wqkv, w_phi, wo):
        B, S, D = x.shape
        H = 32; Dh = D // H
        qkv = (lambda x, *d: x.permute(*d))((x @ wqkv).reshape(B, S, 3, H, Dh), 2, 0, 3, 1, 4)
        q, k, v = qkv[0], qkv[1], qkv[2]
        pq = torch.einsum("bhsd,hdf->bhsf", q, w_phi)
        pk = torch.einsum("bhsd,hdf->bhsf", k, w_phi)
        phi_q = torch.concatenate([_softmax(pq, axis=-1), _softmax(-pq, axis=-1)], axis=-1)
        phi_k = torch.concatenate([_softmax(pk, axis=-1), _softmax(-pk, axis=-1)], axis=-1)
        kv = torch.einsum("bhsf,bhsd->bhfd", phi_k, v)
        z  = torch.einsum("bhsf->bhf", phi_k)
        num = torch.einsum("bhqf,bhfd->bhqd", phi_q, kv)
        den = torch.einsum("bhqf,bhf->bhq", phi_q, z)[..., None] + 1e-6
        o = num / den
        return (lambda x, *d: x.permute(*d))(o, 0, 2, 1, 3).reshape(B, S, D) @ wo

    x = A_x
    g = _sigmoid((x * gate_w).sum(-1, keepdims=True))
    a = _A_ref(x, A_c_kv, A_w_q, A_w_uk, A_w_uv, A_w_o)
    b = _B_ref(x, B_wqkv, B_w_phi, B_wo)
    return g * a + (1 - g) * b
```

```python
NAME = "gated_mix__compressed_kv_cla__linear_kernel_hedgehog__prompt"

WS_Q = 0
WS_K = 16 << 20
WS_V = 32 << 20
WS_O = 48 << 20
WS_PQ = 64 << 20
WS_KVP = 68 << 20
WS_OB = 70 << 20
WS_G = 71 << 20
import os
HPAD = int(os.environ.get('HPAD', '16384'))
WS_K2 = 112 << 20
WS_V2 = 144 << 20
WS_SIZE = 268435456


class Asm:
    def __init__(self):
        self.lines = []

    def __call__(self, s):
        for l in s.strip().split("\n"):
            self.lines.append("    " + l.strip())

    def label(self, l):
        self.lines.append(l + ":")

    def raw(self, l):
        self.lines.append(l)

    def text(self):
        return "\n".join(self.lines) + "\n"


def vr(b, n=4):
    return f"v[{b}:{b + n - 1}]"


def sr(b, n=4):
    return f"s[{b}:{b + n - 1}]"


def srd(a, d, base, size):
    a(f"s_mov_b32 s{d}, s{base}")
    a(f"s_and_b32 s{d + 1}, s{base + 1}, 0xffff")
    a(f"s_mov_b32 s{d + 2}, {size}")
    a(f"s_mov_b32 s{d + 3}, 0x00020000")


def mfma(a, d, A, B, c=None):
    cc = vr(d, 16) if c is None else c
    a(f"v_mfma_f32_32x32x16_bf16 {vr(d, 16)}, {vr(A)}, {vr(B)}, {cc}")


def pack8(a, dst, src):
    for i in range(4):
        a(f"v_cvt_pk_bf16_f32 v{dst + i}, v{src + 2 * i}, v{src + 2 * i + 1}")


def kernel_begin(a, label):
    a.raw(".text")
    a.raw(f".globl {label}")
    a.raw(".p2align 8")
    a.raw(f".type {label},@function")
    a.label(label)


def kernel_desc(a, label, vgpr=256, sgpr=102):
    a.raw('.section .rodata,"a"')
    a.raw(".p2align 6")
    a.raw(f".amdhsa_kernel {label}")
    a.raw(f"  .amdhsa_next_free_vgpr {vgpr}")
    a.raw(f"  .amdhsa_next_free_sgpr {sgpr}")
    a.raw(f"  .amdhsa_accum_offset {(vgpr + 3) // 4 * 4}")
    a.raw("  .amdhsa_group_segment_fixed_size 0")
    a.raw("  .amdhsa_kernarg_size 112")
    a.raw("  .amdhsa_user_sgpr_count 2")
    a.raw("  .amdhsa_user_sgpr_kernarg_segment_ptr 1")
    a.raw("  .amdhsa_system_sgpr_workgroup_id_x 1")
    a.raw(".end_amdhsa_kernel")


def bf16_round(a, dst, src, tmp=None):
    a(f"v_cvt_pk_bf16_f32 v{dst}, v{src}, v{src}")
    a(f"v_lshlrev_b32 v{dst}, 16, v{dst}")
```

```python
from common import *

LOG2E = 0x3FB8AA3B

V_XD = 4
V_WD = 8
V_XA = 12
V_WA = 16
V_L16 = 18
V_LANE = 19
V_T = 20
FA = 64
FB = 88
ACC = 128

S_X = 8
S_W = 12
S_WS = 16
S_WAVE = 20
S_MODE = 21
S_MT = 22
S_NL = 23
S_SEC = 24
S_WSTEP = 25
S_ORI = 26
S_M0X = 27
S_M0W = 28
S_T = 30
S_PHI = 52


def read_frags(a, fs, buf, s):
    for tgl in range(4):
        a(f"ds_read_b128 {vr(fs + 4 * tgl)}, v{V_XA + s} offset:{buf * 32768 + tgl * 4096}")
    for jj in range(2):
        for inst in range(2):
            a(f"ds_read_b64_tr_b16 {vr(fs + 16 + 4 * jj + 2 * inst, 2)}, v{2 + jj} offset:{s * 8192 + inst * 2048}")


S_ROT = 29


def stage_offs(a, stage):
    a(f"s_add_u32 s31, s{S_ROT}, {stage}")
    a("s_and_b32 s31, s31, 7")
    a("s_lshl_b32 s30, s31, 7")
    a(f"s_mul_i32 s31, s{S_WSTEP}, s31")


def issue_dma(a, buf, stage):
    stage_offs(a, stage)
    for i in range(4):
        a(f"s_add_u32 m0, s{S_M0X}, {buf * 32768 + i * 1024}")
        a("s_nop 0")
        a(f"buffer_load_dwordx4 v{V_XD + i}, {sr(S_X)}, s30 offen lds")
    for i in range(4):
        a(f"s_add_u32 m0, s{S_M0W}, {buf * 32768 + i * 1024}")
        a("s_nop 0")
        a(f"buffer_load_dwordx4 v{V_WD + i}, {sr(S_W)}, s31 offen lds")


import os
K1S = os.environ.get("K1S", "")


def stamp_end(a):
    if not K1S:
        return
    a("s_waitcnt vmcnt(0)")
    a("s_memtime s[76:77]")
    a("s_waitcnt lgkmcnt(0)")
    a("s_sub_u32 s72, s72, s70")
    a("s_sub_u32 s74, s74, s70")
    a("s_sub_u32 s76, s76, s70")
    a("v_mov_b32 v12, s78")
    a("v_mov_b32 v13, s72")
    a("v_mov_b32 v14, s74")
    a("v_mov_b32 v15, s76")
    a("s_lshl_b32 s33, s2, 3")
    a(f"s_add_u32 s33, s33, s{S_WAVE}")
    a("s_lshl_b32 s33, s33, 4")
    a("s_add_u32 s33, s33, 0xC800000")
    a("v_mov_b32 v16, 0")
    a(f"buffer_store_dwordx4 v[12:15], v16, {sr(S_WS)}, s33 offen")


K1G = [int(x) for x in os.environ.get("K1G", "0,2,4,6,8,10,12,14").split(",")]


def dma_one(a, buf, i):
    if i < 4:
        a(f"s_add_u32 m0, s{S_M0X}, {buf * 32768 + i * 1024}")
        a("s_nop 0")
        a(f"buffer_load_dwordx4 v{V_XD + i}, {sr(S_X)}, s30 offen lds")
    else:
        i -= 4
        a(f"s_add_u32 m0, s80, {i * 1024}")
        a("s_nop 0")
        a(f"buffer_load_dwordx4 v{V_WD + i}, {sr(S_W)}, s31 offen lds")


S_XOFF = 56
S_XNXT = 57


def part_off(a, part, t):
    r = 30 + part
    a(f"s_add_u32 s{r}, s{S_ROT}, {t & 7}")
    a(f"s_and_b32 s{r}, s{r}, 7")
    if part == 0:
        a(f"s_lshl_b32 s{r}, s{r}, 7")
        a(f"s_add_u32 s{r}, s{r}, s{S_XNXT if t >= 8 else S_XOFF}")
    else:
        a(f"s_mul_i32 s{r}, s{S_WSTEP}, s{r}")


GA = [int(x) for x in os.environ.get("K1GA", "1,3,5,7").split(",")]
GB = [int(x) for x in os.environ.get("K1GB", "1,3,5,7").split(",")]


def main_loop(a, normal):
    tag = "N" if normal else "T"
    a.label(f"K1_LOOP{tag}")
    for stage in range(8):
        buf = stage & 1
        for s in range(4):
            cur = FA if s % 2 == 0 else FB
            nxt = FB if s % 2 == 0 else FA
            if s < 3:
                read_frags(a, nxt, buf, s + 1)
                a("s_waitcnt lgkmcnt(8)")
            else:
                a("s_add_u32 s69, s69, 32768")
                a("s_cmp_eq_u32 s69, 98304")
                a("s_cselect_b32 s69, 0, s69")
                a("s_waitcnt vmcnt(4) lgkmcnt(0)")
                if stage >= 6:
                    a(f"s_cbranch_vccnz K1_W4{tag}{stage}")
                    a("s_waitcnt vmcnt(0)")
                    a.label(f"K1_W4{tag}{stage}")
                a(f"v_add_u32 v2, s69, v{V_WA}")
                a(f"v_add_u32 v3, s69, v{V_WA + 1}")
                a("s_barrier")
                read_frags(a, nxt, buf ^ 1, 0)
                if stage == int(os.environ.get("K1PFS", "3")):
                    a(f"s_cbranch_vccz K1_PFS{tag}")
                    a(f"buffer_load_dword v26, v27, {sr(S_X)}, s68 offen")
                    a.label(f"K1_PFS{tag}")
            if s == 0:
                part_off(a, 1, stage + 2)
                a("s_add_u32 s81, s81, 32768")
                a("s_cmp_eq_u32 s81, 98304")
                a("s_cselect_b32 s81, 0, s81")
                a(f"s_add_u32 s80, s81, s{S_M0W}")
            if s == 3:
                part_off(a, 0, stage + 2)
            for tgl in range(4):
                for jj in range(2):
                    d = ACC + 16 * (tgl * 2 + jj)
                    xf = cur + 4 * tgl
                    wf = cur + 16 + 4 * jj
                    c = "0" if (stage == 0 and s == 0) else None
                    if normal:
                        mfma(a, d, xf, wf, c)
                    else:
                        mfma(a, d, wf, xf, c)
                    gap = tgl * 2 + jj
                    tgt = None
                    if s == 0 and gap in GB:
                        tgt, i = stage + 2, 4 + GB.index(gap)
                    if s == 3 and gap in GA:
                        tgt, i = stage + 2, GA.index(gap)
                    if tgt is not None:
                        if tgt >= 8:
                            a(f"s_cbranch_vccz K1_SK{tag}{stage}_{i}")
                        dma_one(a, tgt & 1, i)
                        if tgt >= 8:
                            a.label(f"K1_SK{tag}{stage}_{i}")


def softmax8(a, src, dstp, t):
    a(f"v_max3_f32 v{t}, v{src}, v{src + 1}, v{src + 2}")
    a(f"v_max3_f32 v{t}, v{t}, v{src + 3}, v{src + 4}")
    a(f"v_max3_f32 v{t}, v{t}, v{src + 5}, v{src + 6}")
    a(f"v_max_f32 v{t}, v{t}, v{src + 7}")
    a(f"v_mov_b32 v{t + 1}, v{t}")
    a("s_nop 1")
    a(f"v_permlane32_swap_b32 v{t}, v{t + 1}")
    a("s_nop 1")
    a(f"v_max_f32 v{t}, v{t}, v{t + 1}")
    for i in range(8):
        a(f"v_sub_f32 v{src + i}, v{src + i}, v{t}")
    for i in range(8):
        a(f"v_mul_f32 v{src + i}, s33, v{src + i}")
    for i in range(8):
        a(f"v_exp_f32 v{src + i}, v{src + i}")
    a("s_nop 0")
    a(f"v_add_f32 v{t}, v{src}, v{src + 1}")
    for i in range(2, 8):
        a(f"v_add_f32 v{t}, v{t}, v{src + i}")
    a(f"v_mov_b32 v{t + 1}, v{t}")
    a("s_nop 1")
    a(f"v_permlane32_swap_b32 v{t}, v{t + 1}")
    a("s_nop 1")
    a(f"v_add_f32 v{t}, v{t}, v{t + 1}")
    a(f"v_rcp_f32 v{t}, v{t}")
    a("s_nop 0")
    for i in range(8):
        a(f"v_mul_f32 v{src + i}, v{src + i}, v{t}")
    pack8(a, dstp, src)


def gen_k1(a):
    L = "proj_kernel"
    kernel_begin(a, L)
    a("s_cmp_ge_u32 s2, 256")
    a("s_cbranch_scc1 K1_EXIT")
    if K1S:
        a("s_memtime s[70:71]")
        a("s_memrealtime s[78:79]")
    a("s_load_dwordx4 s[36:39], s[0:1], 0")
    a("s_load_dwordx4 s[40:43], s[0:1], 16")
    a("s_load_dwordx2 s[44:45], s[0:1], 32")
    a("s_load_dwordx4 s[48:51], s[0:1], 56")
    a("s_load_dwordx2 s[46:47], s[0:1], 104")
    a("s_load_dwordx2 s[58:59], s[0:1], 80")
    a("v_lshrrev_b32 v1, 6, v0")
    a(f"v_and_b32 v{V_LANE}, 63, v0")
    a(f"v_readfirstlane_b32 s{S_WAVE}, v1")
    a(f"v_lshlrev_b32 v{V_L16}, 4, v{V_LANE}")
    a("s_waitcnt lgkmcnt(0)")
    srd(a, S_WS, 46, WS_SIZE)
    srd(a, S_PHI, 50, 32 * 16 * 16 * 2)
    srd(a, 64, 58, 512 * 2)
    if os.environ.get("K1ROT", "1") == "1":
        a(f"s_bfe_u32 s{S_ROT}, s2, 0x30003")
    else:
        a(f"s_mov_b32 s{S_ROT}, 0")
    a("s_cmp_lt_u32 s2, 64")
    a("s_cbranch_scc1 K1_BMODE")
    a(f"s_mov_b32 s{S_MODE}, 0")
    a("s_sub_u32 s30, s2, 64")
    a("s_and_b32 s31, s30, 7")
    a("s_lshr_b32 s32, s30, 3")
    a(f"s_and_b32 s{S_MT}, s32, 3")
    a("s_lshr_b32 s32, s32, 2")
    if os.environ.get("K1R2", "1") == "1":
        a(f"s_lshl_b32 s{S_ROT}, s{S_MT}, 1")
        a(f"s_add_u32 s{S_ROT}, s{S_ROT}, s32")
        a(f"s_and_b32 s{S_ROT}, s{S_ROT}, 7")
    if os.environ.get("K1MAP", "0") == "1":
        a("s_lshl_b32 s31, s31, 1")
        a("s_and_b32 s33, s32, 1")
        a("s_add_u32 s31, s31, s33")
        a("s_lshr_b32 s32, s32, 1")
        a("s_lshl_b32 s32, s32, 4")
    else:
        a("s_mul_i32 s31, s31, 6")
    a("s_add_u32 s32, s32, s31")
    a(f"s_lshr_b32 s{S_SEC}, s32, 4")
    a(f"s_and_b32 s{S_NL}, s32, 15")
    a(f"s_cmp_eq_u32 s{S_SEC}, 0")
    a("s_cselect_b32 s30, s36, s38")
    a("s_cselect_b32 s31, s37, s39")
    if os.environ.get("K1X") == "1":
        a("s_mov_b32 s30, s36")
        a("s_mov_b32 s31, s37")
    if os.environ.get("K1X") == "2":
        a("s_mov_b32 s30, s38")
        a("s_mov_b32 s31, s39")
    srd(a, S_X, 30, 2048 * 512 * 2)
    a(f"s_cmp_eq_u32 s{S_SEC}, 0")
    a("s_cselect_b32 s30, s40, s42")
    a("s_cselect_b32 s31, s41, s43")
    a(f"s_cmp_eq_u32 s{S_SEC}, 2")
    a("s_cselect_b32 s30, s44, s30")
    a("s_cselect_b32 s31, s45, s31")
    a(f"s_cselect_b32 s{S_ORI}, 1, 0")
    if os.environ.get("K1W"):
        a("s_mov_b32 s30, s40")
        a("s_mov_b32 s31, s41")
    srd(a, S_W, 30, 512 * 4096 * 2)
    a(f"s_mov_b32 s{S_WSTEP}, {64 * 8192}")
    a("s_mov_b32 s34, 8192")
    a(f"s_lshl_b32 s35, s{S_NL}, 9")
    a("s_branch K1_COMMON")
    a.label("K1_BMODE")
    a(f"s_mov_b32 s{S_MODE}, 1")
    a(f"s_and_b32 s{S_MT}, s2, 7")
    a(f"s_lshr_b32 s{S_NL}, s2, 3")
    a(f"s_mov_b32 s{S_SEC}, 3")
    srd(a, S_X, 36, 2048 * 512 * 2)
    srd(a, S_W, 48, 512 * 1536 * 2)
    a(f"s_mov_b32 s{S_WSTEP}, {64 * 3072}")
    a("s_mov_b32 s34, 3072")
    a(f"s_lshl_b32 s35, s{S_NL}, 7")
    a(f"s_lshr_b32 s30, s{S_WAVE}, 1")
    a("s_cmp_eq_u32 s30, 1")
    a(f"s_cselect_b32 s{S_ORI}, 1, 0")
    a.label("K1_COMMON")
    T = V_T
    lane = V_LANE
    a(f"v_lshrrev_b32 v{T}, 3, v{lane}")
    a(f"v_lshrrev_b32 v{T + 1}, 4, v{lane}")
    a(f"v_and_b32 v{T + 2}, 7, v{lane}")
    a(f"s_lshl_b32 s30, s{S_MT}, 8")
    a(f"s_lshl_b32 s31, s{S_WAVE}, 5")
    a("s_add_u32 s30, s30, s31")
    for i in range(4):
        a(f"v_add_u32 v{T + 3}, {4 * i}, v{T + 1}")
        a(f"v_and_b32 v{T + 3}, 7, v{T + 3}")
        a(f"v_xor_b32 v{T + 3}, v{T + 3}, v{T + 2}")
        a(f"v_add_u32 v{T + 4}, s30, v{T}")
        a(f"v_add_u32 v{T + 4}, {8 * i}, v{T + 4}")
        a(f"v_lshlrev_b32 v{T + 4}, 10, v{T + 4}")
        a(f"v_lshl_add_u32 v{V_XD + i}, v{T + 3}, 4, v{T + 4}")
    a(f"v_lshrrev_b32 v{T}, 5, v{lane}")
    a(f"v_bfe_u32 v{T + 1}, v{lane}, 2, 3")
    a(f"v_and_b32 v{T + 2}, 3, v{lane}")
    a(f"s_lshl_b32 s31, s{S_WAVE}, 3")
    for i in range(4):
        a(f"v_add_u32 v{T + 3}, {2 * i}, v{T}")
        a(f"v_and_b32 v{T + 4}, 3, v{T + 3}")
        a(f"v_xor_b32 v{T + 4}, v{T + 4}, v{T + 1}")
        a(f"v_add_u32 v{T + 3}, s31, v{T + 3}")
        a(f"v_mul_lo_u32 v{T + 3}, v{T + 3}, s34")
        a(f"s_cmp_eq_u32 s{S_MODE}, 1")
        a(f"s_cbranch_scc1 K1_WCOLB{i}")
        a(f"v_lshlrev_b32 v{T + 5}, 6, v{T + 4}")
        a(f"s_branch K1_WCOLD{i}")
        a.label(f"K1_WCOLB{i}")
        a(f"v_lshrrev_b32 v{T + 6}, 1, v{T + 4}")
        a(f"v_add_u32 v{T + 5}, 1, v{T + 6}")
        a(f"v_cmp_gt_u32 vcc, 2, v{T + 6}")
        a("s_nop 1")
        a(f"v_cndmask_b32 v{T + 5}, 0, v{T + 5}, vcc")
        a(f"v_lshlrev_b32 v{T + 5}, 10, v{T + 5}")
        a(f"v_and_b32 v{T + 6}, 1, v{T + 4}")
        a(f"v_lshl_add_u32 v{T + 5}, v{T + 6}, 6, v{T + 5}")
        a.label(f"K1_WCOLD{i}")
        a(f"v_lshl_add_u32 v{T + 5}, v{T + 2}, 4, v{T + 5}")
        a(f"v_add3_u32 v{V_WD + i}, v{T + 3}, v{T + 5}, s35")
    a(f"s_lshl_b32 s{S_M0X}, s{S_WAVE}, 12")
    a(f"s_add_u32 s{S_M0W}, s{S_M0X}, 65536")
    a(f"v_and_b32 v{T}, 31, v{lane}")
    a(f"v_lshrrev_b32 v{T + 1}, 5, v{lane}")
    a(f"v_bfe_u32 v{T + 2}, v{lane}, 1, 3")
    a(f"v_xor_b32 v{T + 1}, v{T + 1}, v{T + 2}")
    a(f"s_and_b32 s30, s{S_WAVE}, 1")
    a("s_lshl_b32 s30, s30, 14")
    a(f"v_lshlrev_b32 v{T}, 7, v{T}")
    a(f"v_add_u32 v{T}, s30, v{T}")
    for s in range(4):
        a(f"v_xor_b32 v{T + 3}, {2 * s}, v{T + 1}")
        a(f"v_lshl_add_u32 v{V_XA + s}, v{T + 3}, 4, v{T}")
    a(f"v_lshrrev_b32 v{T}, 5, v{lane}")
    a(f"v_bfe_u32 v{T + 1}, v{lane}, 2, 2")
    a(f"v_lshl_add_u32 v{T}, v{T}, 3, v{T + 1}")
    a(f"v_lshlrev_b32 v{T}, 9, v{T}")
    a(f"v_bfe_u32 v{T + 2}, v{lane}, 4, 1")
    a(f"v_lshl_add_u32 v{T}, v{T + 2}, 5, v{T}")
    a(f"v_and_b32 v{T + 2}, 3, v{lane}")
    a(f"v_lshl_add_u32 v{T}, v{T + 2}, 3, v{T}")
    a(f"v_add_u32 v{T}, 0x10000, v{T}")
    a(f"s_lshr_b32 s30, s{S_WAVE}, 1")
    a("s_lshl_b32 s30, s30, 1")
    for jj in range(2):
        a(f"s_add_u32 s31, s30, {jj}")
        a(f"v_xor_b32 v{T + 3}, s31, v{T + 1}")
        a(f"v_lshl_add_u32 v{V_WA + jj}, v{T + 3}, 6, v{T}")
    PH = 28
    a(f"s_cmp_eq_u32 s{S_MODE}, 0")
    a("s_cbranch_scc1 K1_NOPHI")
    a(f"v_lshrrev_b32 v{T}, 5, v{lane}")
    a(f"v_lshlrev_b32 v{T}, 7, v{T}")
    a(f"v_and_b32 v{T + 1}, 15, v{lane}")
    a(f"v_lshl_add_u32 v{T}, v{T + 1}, 1, v{T}")
    a(f"s_lshl_b32 s35, s{S_NL}, 11")
    for hl in range(4):
        for e in range(8):
            g, i = divmod(e, 4)
            a(f"buffer_load_ushort v{PH + 8 * hl + e}, v{T}, {sr(S_PHI)}, s35 offen offset:{hl * 512 + (8 * g + i) * 32}")
    a("s_branch K1_NOPF")
    a.label("K1_NOPHI")
    a("s_sub_u32 s30, s2, 64")
    a("s_lshr_b32 s30, s30, 5")
    a("s_and_b32 s30, s30, 3")
    a(f"v_lshrrev_b32 v27, 3, v0")
    a(f"v_and_b32 v{T + 1}, 7, v0")
    a(f"v_lshlrev_b32 v27, 10, v27")
    a(f"v_lshl_add_u32 v27, v{T + 1}, 7, v27")
    a(f"s_lshl_b32 s68, s{S_MT}, 18")
    a("s_lshl_b32 s32, s30, 16")
    a("s_add_u32 s68, s68, s32")
    a(f"s_add_u32 s68, s68, {1 << 20}")
    a.label("K1_NOPF")
    a(f"s_mov_b32 s{S_XOFF}, 0")
    a(f"s_mov_b32 s{S_XNXT}, {1 << 20}")
    issue_dma(a, 0, 0)
    part_off(a, 0, 1)
    for i in range(4):
        dma_one(a, 1, i)
    part_off(a, 1, 1)
    a("s_mov_b32 s81, 32768")
    a(f"s_add_u32 s80, s81, s{S_M0W}")
    a("s_mov_b32 s69, 0")
    a(f"v_mov_b32 v2, v{V_WA}")
    a(f"v_mov_b32 v3, v{V_WA + 1}")
    for i in range(4, 8):
        dma_one(a, 1, i)
    a(f"s_cmp_eq_u32 s{S_MODE}, 0")
    a("s_cselect_b64 vcc, -1, 0")
    a("s_waitcnt vmcnt(8)")
    a("s_barrier")
    if K1S:
        a("s_memtime s[72:73]")
    read_frags(a, FA, 0, 0)
    a.label("K1_AGAIN")
    a(f"s_cmp_eq_u32 s{S_ORI}, 1")
    a("s_cbranch_scc1 K1_LOOPN")
    main_loop(a, False)
    a("s_branch K1_EPI")
    main_loop(a, True)
    a.label("K1_EPI")
    if K1S:
        a("s_memtime s[74:75]")
    a("s_nop 15")
    a(f"s_cmp_eq_u32 s{S_MODE}, 1")
    a("s_cbranch_scc1 K1_EPIB")
    a(f"s_lshr_b32 s30, s{S_WAVE}, 1")
    a(f"s_and_b32 s31, s{S_WAVE}, 1")
    a(f"s_lshr_b32 s32, s30, 1")
    a(f"s_lshl_b32 s33, s{S_NL}, 1")
    a("s_add_u32 s32, s32, s33")
    a(f"s_mul_i32 s35, s32, {HPAD}")
    a(f"s_cmp_eq_u32 s{S_SEC}, 1")
    a(f"s_mov_b32 s33, {WS_V2 - (32 << 20)}")
    a(f"s_cselect_b32 s33, {WS_K2 - (16 << 20)}, s33")
    a("s_add_u32 s35, s35, s33")
    a(f"s_cmp_eq_u32 s{S_SEC}, 0")
    a("s_cselect_b32 s35, 0, s35")
    if os.environ.get("K1NOPAD"):
        a("s_mov_b32 s35, 0")
    a("s_lshl_b32 s32, s32, 6")
    a(f"s_lshl_b32 s33, s{S_MT}, 3")
    a("s_add_u32 s32, s32, s33")
    a("s_lshl_b32 s33, s31, 2")
    a("s_add_u32 s32, s32, s33")
    a("s_lshl_b32 s32, s32, 13")
    a(f"s_lshl_b32 s33, s{S_SEC}, 24")
    a("s_add_u32 s32, s32, s33")
    a("s_add_u32 s32, s32, s35")
    a("s_and_b32 s30, s30, 1")
    a(f"s_cmp_eq_u32 s{S_ORI}, 1")
    a("s_cbranch_scc1 K1_EPIV")
    a(f"s_cmp_lg_u32 s{S_SEC}, 0")
    a("s_cbranch_scc1 K1_NOSCALE")
    a("s_mov_b32 s35, 0x3e0293ee")
    for r in range(128):
        a(f"v_mul_f32 v{ACC + r}, s35, v{ACC + r}")
    a.label("K1_NOSCALE")
    a("s_lshl_b32 s33, s30, 12")
    a("s_add_u32 s32, s32, s33")
    k = 0
    for tgl in range(4):
        for jj in range(2):
            d = ACC + 16 * (tgl * 2 + jj)
            for sp in range(2):
                t = 24 + 4 * (k % 8)
                k += 1
                pack8(a, t, d + 8 * sp)
                a(f"s_add_u32 s34, s32, {tgl * 8192}")
                a(f"buffer_store_dwordx4 {vr(t)}, v{V_L16}, {sr(S_WS)}, s34 offen offset:{(2 * jj + sp) * 1024}")
    a("s_cbranch_vccz K1_FIN")
    a(f"s_add_u32 s{S_MT}, s{S_MT}, 4")
    a(f"s_mov_b32 s{S_XOFF}, s{S_XNXT}")
    a("s_mov_b64 vcc, 0")
    a("s_branch K1_AGAIN")

    a.label("K1_EPIV")
    a("s_lshl_b32 s33, s30, 11")
    a("s_add_u32 s32, s32, s33")
    k = 0
    for tgl in range(4):
        for jj in range(2):
            d = ACC + 16 * (tgl * 2 + jj)
            for sp in range(2):
                t = 24 + 4 * (k % 8)
                k += 1
                pack8(a, t, d + 8 * sp)
                a(f"s_add_u32 s34, s32, {tgl * 8192 + sp * 4096}")
                a(f"buffer_store_dwordx4 {vr(t)}, v{V_L16}, {sr(S_WS)}, s34 offen offset:{jj * 1024}")
    a("s_cbranch_vccz K1_FIN")
    a(f"s_add_u32 s{S_MT}, s{S_MT}, 4")
    a(f"s_mov_b32 s{S_XOFF}, s{S_XNXT}")
    a("s_mov_b64 vcc, 0")
    a("s_branch K1_AGAIN")
    a.label("K1_FIN")
    stamp_end(a)
    a("s_endpgm")

    a.label("K1_EPIB")
    a("s_waitcnt lgkmcnt(0)")
    a("s_barrier")
    a(f"s_lshr_b32 s30, s{S_WAVE}, 1")
    a(f"s_and_b32 s31, s{S_WAVE}, 1")
    a(f"s_mov_b32 s33, 0x{LOG2E:x}")
    a("s_cmp_eq_u32 s30, 1")
    a("s_cbranch_scc1 K1_BV")
    a("s_cmp_eq_u32 s30, 2")
    a("s_cbranch_scc1 K1_BGATE")
    a(f"v_lshrrev_b32 v{T}, 5, v{lane}")
    a(f"v_lshlrev_b32 v{T}, 7, v{T}")
    a(f"v_and_b32 v{T + 1}, 15, v{lane}")
    a(f"v_lshl_add_u32 v{T}, v{T + 1}, 1, v{T}")
    a(f"v_bfe_u32 v{T + 1}, v{lane}, 4, 1")
    a(f"v_mul_u32_u24 v{T + 1}, 0x8000, v{T + 1}")
    a(f"v_lshl_or_b32 v{T + 1}, v{T + 1}, 16, v{T + 1}")
    a(f"v_and_b32 v{T + 2}, 31, v{lane}")
    a(f"v_lshlrev_b32 v{T + 2}, 6, v{T + 2}")
    a(f"v_lshrrev_b32 v{T + 3}, 5, v{lane}")
    a(f"v_lshl_add_u32 v{T + 2}, v{T + 3}, 3, v{T + 2}")
    a("s_lshl_b32 s32, s31, 13")
    a(f"v_add_u32 v{T + 2}, s32, v{T + 2}")
    WP = 60
    XF = 88
    DD = 64
    PP = 80
    for jj in range(2):
        for sp in range(2):
            hl = 2 * jj + sp
            a(f"s_lshl_b32 s34, s{S_NL}, 2")
            a(f"s_add_u32 s34, s34, {hl}")
            for q in range(4):
                a(f"v_lshl_or_b32 v{WP + q}, v{PH + 8 * hl + 2 * q + 1}, 16, v{PH + 8 * hl + 2 * q}")
                a(f"v_xor_b32 v{WP + q}, v{WP + q}, v{T + 1}")
            for tgl in range(4):
                d = ACC + 16 * (tgl * 2 + jj)
                pack8(a, XF, d + 8 * sp)
                a("s_nop 1")
                mfma(a, DD, WP, XF, "0")
                a("s_nop 15")
                for r in range(16):
                    bf16_round(a, DD + r, DD + r)
                softmax8(a, DD, PP, T + 4)
                softmax8(a, DD + 8, PP + 4, T + 4)
                a("s_cmp_eq_u32 s30, 3")
                a(f"s_cbranch_scc1 K1_BQ{hl}_{tgl}")
                for g in range(4):
                    a(f"ds_write_b64 v{T + 2}, {vr(PP + 2 * g, 2)} offset:{hl * 16384 + tgl * 2048 + g * 16}")
                a(f"s_branch K1_BQD{hl}_{tgl}")
                a.label(f"K1_BQ{hl}_{tgl}")
                a("s_lshl_b32 s36, s34, 6")
                a(f"s_lshl_b32 s37, s{S_MT}, 3")
                a("s_add_u32 s36, s36, s37")
                a("s_lshl_b32 s37, s31, 2")
                a("s_add_u32 s36, s36, s37")
                a(f"s_add_u32 s36, s36, {tgl}")
                a("s_lshl_b32 s36, s36, 11")
                a(f"s_add_u32 s36, s36, {WS_PQ}")
                a(f"buffer_store_dwordx4 {vr(PP)}, v{V_L16}, {sr(S_WS)}, s36 offen")
                a(f"buffer_store_dwordx4 {vr(PP + 4)}, v{V_L16}, {sr(S_WS)}, s36 offen offset:1024")
                a("s_nop 1")
                a.label(f"K1_BQD{hl}_{tgl}")
    a("s_branch K1_BIDLE")
    a.label("K1_BGATE")
    GX = 64; GW = 128; GS = 136
    a(f"buffer_load_dwordx4 {vr(T)}, v{V_L16}, {sr(64)}, 0 offen")
    a(f"s_lshl_b32 s34, s{S_MT}, 8")
    a(f"s_lshl_b32 s35, s{S_NL}, 5")
    a("s_add_u32 s34, s34, s35")
    a("s_lshl_b32 s35, s31, 4")
    a("s_add_u32 s34, s34, s35")
    a("s_lshl_b32 s35, s34, 10")
    for i in range(16):
        a(f"s_add_u32 s36, s35, {i * 1024}")
        a(f"buffer_load_dwordx4 {vr(GX + 4 * i)}, v{V_L16}, {sr(S_X)}, s36 offen")
    a("s_lshl_b32 s34, s34, 2")
    a(f"s_add_u32 s34, s34, {WS_G}")
    a(f"v_mov_b32 v{GS + 2}, 0")
    a(f"v_lshlrev_b32 v{GS + 5}, 8, v{V_LANE}")
    a(f"s_mov_b32 s36, {74 << 20}")
    for o in range(8):
        a(f"buffer_store_dword v{GS + 2}, v{GS + 5}, {sr(S_WS)}, s36 offen offset:{4 * o}")
    a(f"buffer_store_dword v{GS + 2}, v{GS + 5}, {sr(S_WS)}, s36 offen offset:128")
    a("s_waitcnt vmcnt(25)")
    for q in range(4):
        a(f"v_lshlrev_b32 v{GW + 2 * q}, 16, v{T + q}")
        a(f"v_and_b32 v{GW + 2 * q + 1}, 0xffff0000, v{T + q}")
    a("s_waitcnt vmcnt(0)")
    for i in range(16):
        for q in range(4):
            a(f"v_lshlrev_b32 v{T + 2 * q}, 16, v{GX + 4 * i + q}")
            a(f"v_and_b32 v{T + 2 * q + 1}, 0xffff0000, v{GX + 4 * i + q}")
        for e in range(8):
            a(f"v_mul_f32 v{T + e}, v{T + e}, v{GW + e}")
        for e in range(8):
            bf16_round(a, T + e, T + e)
        a(f"v_add_f32 v{GS}, v{T}, v{T + 1}")
        for e in range(2, 8):
            a(f"v_add_f32 v{GS}, v{GS}, v{T + e}")
        for sh in (8, 4, 2, 1):
            a("s_nop 1")
            a(f"v_add_f32_dpp v{GS}, v{GS}, v{GS} row_ror:{sh} row_mask:0xf bank_mask:0xf")
        a("s_nop 1")
        for r in range(4):
            a(f"v_readlane_b32 s{36 + r}, v{GS}, {16 * r}")
        a("s_nop 1")
        a(f"v_mov_b32 v{GS + 1}, s36")
        for r in range(1, 4):
            a(f"v_add_f32 v{GS + 1}, s{36 + r}, v{GS + 1}")
        bf16_round(a, GS + 1, GS + 1)
        a(f"v_mul_f32 v{GS + 1}, 0xbfb8aa3b, v{GS + 1}")
        a(f"v_exp_f32 v{GS + 1}, v{GS + 1}")
        a("s_nop 0")
        a(f"v_add_f32 v{GS + 1}, 1.0, v{GS + 1}")
        a(f"v_rcp_f32 v{GS + 1}, v{GS + 1}")
        a("s_nop 0")
        bf16_round(a, GS + 3 + (i & 1), GS + 1)
        a(f"buffer_store_dword v{GS + 3 + (i & 1)}, v{GS + 2}, {sr(S_WS)}, s34 offen offset:{4 * i}")
    a.label("K1_BIDLE")
    a("s_waitcnt lgkmcnt(0)")
    a("s_barrier")
    stamp_end(a)
    a("s_endpgm")
    a.label("K1_BV")
    PV = 40
    for tgl in range(4):
        for jj in range(2):
            d = ACC + 16 * (tgl * 2 + jj)
            for ks in range(2):
                pack8(a, PV + ((tgl * 2 + jj) * 2 + ks) * 4, d + 8 * ks)
    a(f"v_lshrrev_b32 v{T}, 5, v{lane}")
    a(f"v_bfe_u32 v{T + 1}, v{lane}, 2, 2")
    a(f"v_lshl_add_u32 v{T}, v{T}, 2, v{T + 1}")
    a(f"v_lshlrev_b32 v{T}, 6, v{T}")
    a(f"v_bfe_u32 v{T + 1}, v{lane}, 4, 1")
    a(f"v_lshl_add_u32 v{T}, v{T + 1}, 5, v{T}")
    a(f"v_and_b32 v{T + 2}, 3, v{lane}")
    a(f"v_lshl_add_u32 v{T}, v{T + 2}, 3, v{T}")
    a("s_lshl_b32 s32, s31, 13")
    a(f"v_add_u32 v{T}, s32, v{T}")
    a(f"v_cmp_eq_u32 s[60:61], 1, v{T + 1}")
    a(f"v_cmp_eq_u32 s[62:63], 0, v{T + 1}")
    a(f"v_mov_b32 v{T + 3}, 0x3f803f80")
    a("s_barrier")
    KV = 128
    AF = 104
    BF = 108
    for jj in range(2):
        for sp in range(2):
            hl = 2 * jj + sp
            msk = "s[60:61]" if sp == 0 else "s[62:63]"
            first = True
            for tgl in range(4):
                for ks in range(2):
                    for g in range(2):
                        a(f"ds_read_b64_tr_b16 {vr(AF + 2 * g, 2)}, v{T} offset:{hl * 16384 + (32 * tgl + 16 * ks + 8 * g) * 64}")
                    src = PV + ((tgl * 2 + jj) * 2 + ks) * 4
                    for q in range(4):
                        a(f"v_cndmask_b32 v{BF + q}, v{src + q}, v{T + 3}, {msk}")
                    a("s_waitcnt lgkmcnt(0)")
                    a("s_nop 1")
                    mfma(a, KV, AF, BF, "0" if first else None)
                    a("s_nop 3")
                    first = False
            a("s_nop 15")
            a(f"s_lshl_b32 s34, s{S_MT}, 1")
            a("s_add_u32 s34, s34, s31")
            a("s_lshl_b32 s34, s34, 5")
            a(f"s_lshl_b32 s35, s{S_NL}, 2")
            a("s_add_u32 s34, s34, s35")
            a(f"s_add_u32 s34, s34, {hl}")
            a("s_lshl_b32 s34, s34, 12")
            a(f"s_add_u32 s34, s34, {WS_KVP}")
            for q in range(4):
                a(f"buffer_store_dwordx4 {vr(KV + 4 * q)}, v{V_L16}, {sr(S_WS)}, s34 offen offset:{q * 1024}")
            a("s_waitcnt vmcnt(0)")
    stamp_end(a)
    a.label("K1_EXIT")
    a("s_endpgm")
    kernel_desc(a, L)
```

```python
from common import *
import math, struct


def f32(x):
    return struct.unpack("<I", struct.pack("<f", x))[0]


SCALE_C = f32(math.log2(math.e) / math.sqrt(128.0))
NEG_BIG = f32(-1.0e30)

V_L16 = 2
V_LANE = 3
V_LDS = 4
V_REL = 5
V_MC = 6
V_L = 7
V_NEG = 8
V_T = 10
QF = 32
SS = 64
PF = 96
KF = 112
OO = 160

S_WS = 16
S_WAVE = 20
S_HEAD = 21
S_P = 22
S_TL = 23
S_NT = 24
S_T = 25
S_SLOT = 26
S_LDSLOT = 27
S_KOFF = 28
S_VOFF = 29
S_C = 30
S_TG = 31
S_M0 = 32


def issue_kv(a):
    a(f"s_add_u32 m0, s{S_LDSLOT}, s{S_M0}")
    a("s_nop 0")
    a(f"buffer_load_dwordx4 v{V_T + 9}, {sr(S_WS)}, s{S_KOFF} offen lds")
    a(f"buffer_load_dwordx4 v{V_T + 9}, {sr(S_WS)}, s{S_KOFF} offen offset:1024 lds")
    a(f"s_add_u32 s33, s{S_LDSLOT}, 49152")
    a(f"s_add_u32 m0, s33, s{S_M0}")
    a("s_nop 0")
    a(f"buffer_load_dwordx4 v{V_T + 9}, {sr(S_WS)}, s{S_VOFF} offen lds")
    a(f"buffer_load_dwordx4 v{V_T + 9}, {sr(S_WS)}, s{S_VOFF} offen offset:1024 lds")
    a(f"s_add_u32 s{S_KOFF}, s{S_KOFF}, 16384")
    a(f"s_add_u32 s{S_VOFF}, s{S_VOFF}, 16384")
    a(f"s_add_u32 s{S_LDSLOT}, s{S_LDSLOT}, 16384")
    a(f"s_cmp_eq_u32 s{S_LDSLOT}, 49152")
    a(f"s_cselect_b32 s{S_LDSLOT}, 0, s{S_LDSLOT}")


def gen_k2(a):
    L = "attn_kernel"
    kernel_begin(a, L)
    a("s_cmp_ge_u32 s2, 288")
    a("s_cbranch_scc1 K2_EXIT")
    a("s_load_dwordx2 s[46:47], s[0:1], 104")
    a("v_lshrrev_b32 v1, 6, v0")
    a(f"v_and_b32 v{V_LANE}, 63, v0")
    a(f"v_readfirstlane_b32 s{S_WAVE}, v1")
    a(f"v_lshlrev_b32 v{V_L16}, 4, v{V_LANE}")
    a("s_waitcnt lgkmcnt(0)")
    srd(a, S_WS, 46, WS_SIZE)
    a("s_cmp_ge_u32 s2, 256")
    a("s_cbranch_scc1 K2_B2")
    a("s_and_b32 s33, s2, 7")
    a("s_lshl_b32 s33, s33, 2")
    a("s_bfe_u32 s34, s2, 0x20003")
    a(f"s_add_u32 s{S_HEAD}, s33, s34")
    a(f"s_lshr_b32 s{S_P}, s2, 5")
    a(f"s_sub_u32 s33, 15, s{S_P}")
    a(f"s_cmp_ge_u32 s{S_WAVE}, 4")
    a(f"s_cselect_b32 s33, s33, s{S_P}")
    a(f"s_and_b32 s34, s{S_WAVE}, 3")
    a(f"s_lshl_b32 s{S_TG}, s33, 2")
    a(f"s_add_u32 s{S_TG}, s{S_TG}, s34")
    a(f"s_lshr_b32 s{S_TL}, s{S_TG}, 1")
    a(f"s_lshl_b32 s33, s{S_P}, 1")
    a(f"s_sub_u32 s{S_NT}, 32, s33")
    a(f"s_lshl_b32 s{S_M0}, s{S_WAVE}, 11")
    a(f"s_mov_b32 s{S_C}, 0x{SCALE_C:x}")
    a(f"v_add_u32 v{V_T + 9}, s{S_M0}, v{V_L16}")
    a(f"s_lshl_b32 s33, s{S_HEAD}, 19")
    a(f"s_add_u32 s{S_KOFF}, s33, {WS_K}")
    a(f"s_add_u32 s{S_VOFF}, s33, {WS_V}")
    a(f"s_mov_b32 s{S_LDSLOT}, 0")
    a(f"s_lshl_b32 s34, s{S_HEAD}, 6")
    a(f"s_add_u32 s34, s34, s{S_TG}")
    a("s_lshl_b32 s34, s34, 13")
    for ds in range(4):
        a(f"buffer_load_dwordx4 {vr(QF + 4 * ds)}, v{V_L16}, {sr(S_WS)}, s34 offen offset:{ds * 1024}")
    a("s_add_u32 s34, s34, 4096")
    for ds in range(4):
        a(f"buffer_load_dwordx4 {vr(QF + 16 + 4 * ds)}, v{V_L16}, {sr(S_WS)}, s34 offen offset:{ds * 1024}")
    issue_kv(a)
    issue_kv(a)
    a(f"v_and_b32 v{V_T}, 31, v{V_LANE}")
    a(f"v_lshrrev_b32 v{V_T + 1}, 5, v{V_LANE}")
    a(f"v_lshlrev_b32 v{V_T + 1}, 2, v{V_T + 1}")
    a(f"v_sub_u32 v{V_T}, v{V_T}, v{V_T + 1}")
    a(f"s_lshl_b32 s33, s{S_TG}, 5")
    a(f"v_add_u32 v{V_REL}, s33, v{V_T}")
    a(f"v_mov_b32 v{V_MC}, 0x{NEG_BIG:x}")
    a(f"v_mov_b32 v{V_NEG}, 0x{NEG_BIG:x}")
    a(f"v_mov_b32 v{V_L}, 0")
    for r in range(64):
        a(f"v_mov_b32 v{OO + r}, 0")
    a(f"s_mov_b32 s{S_T}, 0")
    a(f"s_mov_b32 s{S_SLOT}, 0")
    a.label("K2_LOOP")
    a("s_waitcnt vmcnt(4)")
    a("s_barrier")
    issue_kv(a)
    a(f"s_cmp_gt_u32 s{S_T}, s{S_TL}")
    a("s_cbranch_scc1 K2_NEXT")
    a(f"v_add_u32 v{V_LDS}, s{S_SLOT}, v{V_L16}")
    for sub in range(2):
        for ds in range(8):
            a(f"ds_read_b128 {vr(KF + 4 * ds)}, v{V_LDS} offset:{(sub * 8 + ds) * 1024}")
        for ds in range(8):
            a(f"s_waitcnt lgkmcnt({7 - ds})")
            mfma(a, SS + 16 * sub, KF + 4 * ds, QF + 4 * ds, "0" if ds == 0 else None)
    a("s_nop 15")
    a(f"s_cmp_lg_u32 s{S_T}, s{S_TL}")
    a("s_cbranch_scc1 K2_NOMASK")
    a(f"s_lshl_b32 s33, s{S_T}, 6")
    a(f"v_subrev_u32 v{V_T}, s33, v{V_REL}")
    for sub in range(2):
        for g in range(4):
            for i in range(4):
                a(f"v_cmp_gt_i32 s[{60 + 2 * i}:{61 + 2 * i}], {32 * sub + 8 * g + i}, v{V_T}")
            a("s_nop 1")
            for i in range(4):
                r = SS + 16 * sub + 4 * g + i
                a(f"v_cndmask_b32 v{r}, v{r}, v{V_NEG}, s[{60 + 2 * i}:{61 + 2 * i}]")
    a.label("K2_NOMASK")
    a(f"v_max3_f32 v{V_T}, v{SS}, v{SS + 1}, v{SS + 2}")
    for r in range(3, 31, 2):
        a(f"v_max3_f32 v{V_T}, v{V_T}, v{SS + r}, v{SS + r + 1}")
    a(f"v_max_f32 v{V_T}, v{V_T}, v{SS + 31}")
    a(f"v_mov_b32 v{V_T + 1}, v{V_T}")
    a("s_nop 1")
    a(f"v_permlane32_swap_b32 v{V_T}, v{V_T + 1}")
    a("s_nop 1")
    a(f"v_max_f32 v{V_T}, v{V_T}, v{V_T + 1}")
    a(f"v_mul_f32 v{V_T}, s{S_C}, v{V_T}")
    a(f"v_sub_f32 v{V_T + 1}, v{V_T}, v{V_MC}")
    a(f"v_cmp_lt_f32 vcc, 8.0, v{V_T + 1}") if False else a(f"v_mov_b32 v{V_T + 2}, 0x41000000")
    a(f"v_cmp_gt_f32 vcc, v{V_T + 1}, v{V_T + 2}")
    a("s_nop 4")
    a("s_cbranch_vccz K2_NORESCALE")
    a(f"v_max_f32 v{V_T}, v{V_T}, v{V_MC}")
    a(f"v_sub_f32 v{V_T + 1}, v{V_MC}, v{V_T}")
    a(f"v_exp_f32 v{V_T + 1}, v{V_T + 1}")
    a(f"v_mov_b32 v{V_MC}, v{V_T}")
    a(f"v_mul_f32 v{V_L}, v{V_L}, v{V_T + 1}")
    for r in range(64):
        a(f"v_mul_f32 v{OO + r}, v{OO + r}, v{V_T + 1}")
    a.label("K2_NORESCALE")
    for r in range(32):
        a(f"v_fma_f32 v{SS + r}, v{SS + r}, s{S_C}, -v{V_MC}")
    for r in range(32):
        a(f"v_exp_f32 v{SS + r}, v{SS + r}")
    a("s_nop 0")
    for r in range(32):
        a(f"v_add_f32 v{V_L}, v{V_L}, v{SS + r}")
    for f in range(4):
        pack8(a, PF + 4 * f, SS + 8 * f)
    for half in range(2):
        k = 0
        for f in range(2 * half, 2 * half + 2):
            for dt in range(4):
                a(f"ds_read_b128 {vr(KF + 4 * k)}, v{V_LDS} offset:{49152 + (f * 4 + dt) * 1024}")
                k += 1
        k = 0
        for f in range(2 * half, 2 * half + 2):
            for dt in range(4):
                a(f"s_waitcnt lgkmcnt({7 - k})")
                mfma(a, OO + 16 * dt, KF + 4 * k, PF + 4 * f)
                k += 1
    a(f"s_cmp_lg_u32 s{S_T}, s{S_TL}")
    a("s_cbranch_scc1 K2_NEXT")
    a("s_nop 15")
    a(f"v_mov_b32 v{V_T}, v{V_L}")
    a(f"v_mov_b32 v{V_T + 1}, v{V_L}")
    a("s_nop 1")
    a(f"v_permlane32_swap_b32 v{V_T}, v{V_T + 1}")
    a("s_nop 1")
    a(f"v_add_f32 v{V_T}, v{V_T}, v{V_T + 1}")
    a(f"v_rcp_f32 v{V_T}, v{V_T}")
    a("s_nop 0")
    for r in range(64):
        a(f"v_mul_f32 v{OO + r}, v{OO + r}, v{V_T}")
    a(f"s_lshl_b32 s33, s{S_TG}, 5")
    a(f"s_add_u32 s33, s33, s{S_HEAD}")
    a("s_lshl_b32 s33, s33, 13")
    a(f"s_add_u32 s33, s33, {WS_O}")
    a("s_add_u32 s34, s33, 4096")
    for ks in range(8):
        pack8(a, SS + 4 * ks, OO + 8 * ks)
        a(f"buffer_store_dwordx4 {vr(SS + 4 * ks)}, v{V_L16}, {sr(S_WS)}, s{33 + ks // 4} offen offset:{(ks % 4) * 1024}")
    a.label("K2_NEXT")
    a(f"s_add_u32 s{S_SLOT}, s{S_SLOT}, 16384")
    a(f"s_cmp_eq_u32 s{S_SLOT}, 49152")
    a(f"s_cselect_b32 s{S_SLOT}, 0, s{S_SLOT}")
    a(f"s_add_u32 s{S_T}, s{S_T}, 1")
    a(f"s_cmp_lt_u32 s{S_T}, s{S_NT}")
    a("s_cbranch_scc1 K2_LOOP")
    a("s_endpgm")

    gen_b2(a)
    a.label("K2_EXIT")
    a("s_endpgm")
    kernel_desc(a, L)


def gen_b2(a):
    a.label("K2_B2")
    a(f"s_sub_u32 s{S_HEAD}, s2, 256")
    AC = 64
    LD = 80
    for q in range(4):
        for p in range(16):
            a(f"s_lshl_b32 s33, s{S_HEAD}, 12")
            a(f"s_add_u32 s33, s33, {WS_KVP + p * 32 * 4096}")
            a(f"buffer_load_dwordx4 {vr(LD + 4 * p)}, v{V_L16}, {sr(S_WS)}, s33 offen offset:{q * 1024}")
        a("s_waitcnt vmcnt(0)")
        for i in range(4):
            a(f"v_add_f32 v{AC + 4 * q + i}, v{LD + i}, v{LD + 4 + i}")
            for p in range(2, 16):
                a(f"v_add_f32 v{AC + 4 * q + i}, v{AC + 4 * q + i}, v{LD + 4 * p + i}")
    AF = 32
    pack8(a, AF, AC)
    pack8(a, AF + 4, AC + 8)
    a(f"s_and_b32 s33, s{S_HEAD}, 1")
    a("s_cmp_eq_u32 s33, 1")
    a("s_cselect_b64 s[60:61], -1, 0")
    a(f"v_mov_b32 v{V_T + 8}, 0x{f32(1e-6):x}")
    BF = 40
    DD = 96
    for i in range(8):
        a(f"s_lshl_b32 s33, s{S_WAVE}, 3")
        a(f"s_add_u32 s33, s33, {i}")
        a(f"s_lshl_b32 s34, s{S_HEAD}, 6")
        a("s_add_u32 s34, s34, s33")
        a("s_lshl_b32 s34, s34, 11")
        a(f"s_add_u32 s34, s34, {WS_PQ}")
        a(f"buffer_load_dwordx4 {vr(BF)}, v{V_L16}, {sr(S_WS)}, s34 offen")
        a(f"buffer_load_dwordx4 {vr(BF + 4)}, v{V_L16}, {sr(S_WS)}, s34 offen offset:1024")
        a("s_waitcnt vmcnt(0)")
        mfma(a, DD, AF, BF, "0")
        mfma(a, DD, AF + 4, BF + 4)
        a("s_nop 15")
        a(f"v_cndmask_b32 v{V_T}, v{DD + 8}, v{DD}, s[60:61]")
        for r in range(8):
            a(f"v_cndmask_b32 v{DD + r}, v{DD + r}, v{DD + 8 + r}, s[60:61]")
        bf16_round(a, V_T, V_T)
        a(f"v_add_f32 v{V_T}, v{V_T}, v{V_T + 8}")
        bf16_round(a, V_T, V_T)
        a(f"v_rcp_f32 v{V_T}, v{V_T}")
        for r in range(8):
            bf16_round(a, DD + r, DD + r)
        for r in range(8):
            a(f"v_mul_f32 v{DD + r}, v{DD + r}, v{V_T}")
        pack8(a, BF + 8, DD)
        a("s_lshl_b32 s33, s33, 5")
        a(f"s_add_u32 s33, s33, s{S_HEAD}")
        a("s_lshl_b32 s33, s33, 10")
        a(f"s_add_u32 s33, s33, {WS_OB}")
        a(f"buffer_store_dwordx4 {vr(BF + 8)}, v{V_L16}, {sr(S_WS)}, s33 offen")
        a("s_nop 1")
```

```python
from common import *
import k2
from k2 import f32, SCALE_C, NEG_BIG

V_L16 = 2; V_LANE = 3
V_K = 4; V_KN = 5; V_V = 6; V_REL = 7; V_MC = 8; V_L = 9; V_NEG = 10; V_DMA = 11
V_T = 12
V_M0 = 20
V_EIGHT = 21
QF = 32
S0 = 64
S1 = 96
PF = 128
FR = 144
OO = 192

S_WS = 16; S_WAVE = 20; S_HEAD = 21; S_P = 22; S_TL = 23; S_NT = 24; S_T = 25
S_KS = 26
S_VS = 27
S_KLD = 28
S_VLD = 29
S_KOFF = 34; S_VOFF = 35; S_C = 30; S_TG = 31; S_M0 = 32
D = 6


def dma_k(a):
    a(f"s_add_u32 m0, s{S_KLD}, s{S_M0}")
    a(f"s_add_u32 s{S_KLD}, s{S_KLD}, 16384")
    a(f"buffer_load_dwordx4 v{V_DMA}, {sr(S_WS)}, s{S_KOFF} offen lds")
    a(f"buffer_load_dwordx4 v{V_DMA}, {sr(S_WS)}, s{S_KOFF} offen offset:1024 lds")
    a(f"s_and_b32 s{S_KLD}, s{S_KLD}, 0xffff")
    a(f"s_add_u32 s{S_KOFF}, s{S_KOFF}, 16384")


def dma_v(a):
    a(f"s_add_u32 m0, s{S_VLD}, s{S_M0}")
    a(f"s_add_u32 s{S_VLD}, s{S_VLD}, 16384")
    a(f"buffer_load_dwordx4 v{V_DMA}, {sr(S_WS)}, s{S_VOFF} offen lds")
    a(f"buffer_load_dwordx4 v{V_DMA}, {sr(S_WS)}, s{S_VOFF} offen offset:1024 lds")
    a(f"s_cmp_eq_u32 s{S_VLD}, {65536 + 49152}")
    a(f"s_cselect_b32 s{S_VLD}, 65536, s{S_VLD}")
    a(f"s_add_u32 s{S_VOFF}, s{S_VOFF}, 16384")


import os
EXP = os.environ.get("K2EXP", "")


def header(a):
    if "nowait" not in EXP:
        a("s_waitcnt vmcnt(4)")
    a("s_barrier")
    dma_k(a)
    dma_v(a)


def addr_update(a):
    a(f"v_add_u32 v{V_K}, s{S_KS}, v{V_L16}")
    a(f"s_add_u32 s33, s{S_KS}, 16384")
    a("s_and_b32 s33, s33, 0xffff")
    a(f"v_add_u32 v{V_KN}, s33, v{V_L16}")
    a(f"v_add_u32 v{V_V}, s{S_VS}, v{V_L16}")


def advance(a):
    a(f"s_add_u32 s{S_KS}, s{S_KS}, 16384")
    a(f"s_and_b32 s{S_KS}, s{S_KS}, 0xffff")
    a(f"s_add_u32 s{S_VS}, s{S_VS}, 16384")
    a(f"s_cmp_eq_u32 s{S_VS}, {65536 + 49152}")
    a(f"s_cselect_b32 s{S_VS}, 65536, s{S_VS}")
    a(f"s_add_u32 s{S_T}, s{S_T}, 1")


def frag_read(i):
    slot = FR + 4 * (i % 8)
    if i >= 32:
        return f"ds_read_b128 {vr(slot)}, v{V_KN} offset:{(i - 32) * 1024}"
    g, k = divmod(i, 8)
    if g == 0:
        return f"ds_read_b128 {vr(slot)}, v{V_K} offset:{k * 1024}"
    if g == 2:
        return f"ds_read_b128 {vr(slot)}, v{V_K} offset:{(8 + k) * 1024}"
    f = (0 if g == 1 else 2) + k // 4
    return f"ds_read_b128 {vr(slot)}, v{V_V} offset:{(f * 4 + k % 4) * 1024}"


def mfma_str(i, SB):
    slot = FR + 4 * (i % 8)
    g, k = divmod(i, 8)
    if g in (0, 2):
        d = SB + (0 if g == 0 else 16)
        c = "0" if k == 0 else vr(d, 16)
        return f"v_mfma_f32_32x32x16_bf16 {vr(d, 16)}, {vr(slot)}, {vr(QF + 4 * k)}, {c}"
    f = (0 if g == 1 else 2) + k // 4
    d = OO + 16 * (k % 4)
    return f"v_mfma_f32_32x32x16_bf16 {vr(d, 16)}, {vr(slot)}, {vr(PF + 4 * f)}, {vr(d, 16)}"


def exp_block(SA, f):
    o = []
    for r in range(8):
        o.append(f"v_fma_f32 v{SA + 8 * f + r}, v{SA + 8 * f + r}, s{S_C}, -v{V_MC}")
    for r in range(8):
        o.append(f"v_exp_f32 v{SA + 8 * f + r}, v{SA + 8 * f + r}")
    for q in range(4):
        o.append(f"v_cvt_pk_bf16_f32 v{PF + 4 * f + q}, v{SA + 8 * f + 2 * q}, v{SA + 8 * f + 2 * q + 1}")
    return o


def add_block(SA, f):
    return [f"v_add_f32 v{V_L}, v{V_L}, v{SA + 8 * f + r}" for r in range(8)]


def max16(dst, src, init=None):
    o = []
    if init is None:
        o.append(f"v_max3_f32 v{dst}, v{src}, v{src + 1}, v{src + 2}")
        rs = list(range(3, 16))
    else:
        o.append(f"v_max3_f32 v{dst}, v{init}, v{src}, v{src + 1}")
        rs = list(range(2, 16))
    while len(rs) >= 2:
        o.append(f"v_max3_f32 v{dst}, v{dst}, v{src + rs[0]}, v{src + rs[1]}")
        rs = rs[2:]
    if rs:
        o.append(f"v_max_f32 v{dst}, v{dst}, v{src + rs[0]}")
    return o


def max_finish():
    return [f"v_mov_b32 v{V_T + 1}, v{V_T}", "s_nop 1",
            f"v_permlane32_swap_b32 v{V_T}, v{V_T + 1}", "s_nop 1",
            f"v_max_f32 v{V_T}, v{V_T}, v{V_T + 1}",
            f"v_mul_f32 v{V_T}, s{S_C}, v{V_T}",
            f"v_sub_f32 v{V_T + 1}, v{V_T}, v{V_MC}",
            f"v_cmp_gt_f32 vcc, v{V_T + 1}, v{V_EIGHT}"]


def rescale(a, tag):
    a("s_nop 4")
    a(f"s_cbranch_vccz K2_NR{tag}")
    a("s_nop 15")
    a(f"v_max_f32 v{V_T}, v{V_T}, v{V_MC}")
    a(f"v_sub_f32 v{V_T + 1}, v{V_MC}, v{V_T}")
    a(f"v_exp_f32 v{V_T + 1}, v{V_T + 1}")
    a(f"v_mov_b32 v{V_MC}, v{V_T}")
    a(f"v_mul_f32 v{V_L}, v{V_L}, v{V_T + 1}")
    for r in range(64):
        a(f"v_mul_f32 v{OO + r}, v{OO + r}, v{V_T + 1}")
    a("s_nop 1")
    a.label(f"K2_NR{tag}")


def mask(a, SB, toff):
    a(f"s_add_u32 s33, s{S_T}, {toff}")
    a("s_lshl_b32 s33, s33, 6")
    a(f"v_subrev_u32 v{V_T}, s33, v{V_REL}")
    for sub in range(2):
        for g in range(4):
            for i in range(4):
                a(f"v_cmp_gt_i32 s[{60 + 2 * i}:{61 + 2 * i}], {32 * sub + 8 * g + i}, v{V_T}")
            a("s_nop 1")
            for i in range(4):
                r = SB + 16 * sub + 4 * g + i
                a(f"v_cndmask_b32 v{r}, v{r}, v{V_NEG}, s[{60 + 2 * i}:{61 + 2 * i}]")


def body(a, par, masked):
    if "nocomp" in EXP:
        return
    SA = S0 if par == 0 else S1
    SB = S1 if par == 0 else S0
    fl = [exp_block(SA, 0) + exp_block(SA, 1),
          add_block(SA, 0) + add_block(SA, 1) + exp_block(SA, 2),
          exp_block(SA, 3) + (max16(V_M0, SB) if not masked else []) + add_block(SA, 2),
          None]
    for i in range(32):
        g, k = divmod(i, 8)
        a(f"s_waitcnt lgkmcnt({D - 1})")
        a(mfma_str(i, SB))
        a(frag_read(i + D))
        if g < 3:
            n = len(fl[g])
            for x in fl[g][k * n // 8:(k + 1) * n // 8]:
                a(x)
        else:
            ad = add_block(SA, 3)
            if k < 2:
                for x in ad[4 * k:4 * k + 4]:
                    a(x)
            elif not masked:
                mx = max16(V_T, SB + 16, V_M0) + max_finish()
                n = len(mx)
                for x in mx[(k - 2) * n // 6:(k - 1) * n // 6]:
                    a(x)
    if masked:
        a("s_nop 7")
        mask(a, SB, 1)
        for x in max16(V_M0, SB) + max16(V_T, SB + 16, V_M0) + max_finish():
            a(x)
    rescale(a, f"B{par}{int(masked)}")


def final(a, par):
    SA = S0 if par == 0 else S1
    a("s_waitcnt lgkmcnt(0)")
    for f in range(4):
        for x in exp_block(SA, f) + ["s_nop 0"] + add_block(SA, f):
            a(x)
    for half in range(2):
        k = 0
        for f in range(2 * half, 2 * half + 2):
            for dt in range(4):
                a(f"ds_read_b128 {vr(FR + 4 * k)}, v{V_V} offset:{(f * 4 + dt) * 1024}")
                k += 1
        k = 0
        for f in range(2 * half, 2 * half + 2):
            for dt in range(4):
                a(f"s_waitcnt lgkmcnt({7 - k})")
                mfma(a, OO + 16 * dt, FR + 4 * k, PF + 4 * f)
                k += 1
    a("s_nop 15")
    a(f"v_mov_b32 v{V_T}, v{V_L}")
    a(f"v_mov_b32 v{V_T + 1}, v{V_L}")
    a("s_nop 1")
    a(f"v_permlane32_swap_b32 v{V_T}, v{V_T + 1}")
    a("s_nop 1")
    a(f"v_add_f32 v{V_T}, v{V_T}, v{V_T + 1}")
    a(f"v_rcp_f32 v{V_T}, v{V_T}")
    a("s_nop 0")
    for r in range(64):
        a(f"v_mul_f32 v{OO + r}, v{OO + r}, v{V_T}")
    a(f"s_lshl_b32 s33, s{S_TG}, 5")
    a(f"s_add_u32 s33, s33, s{S_HEAD}")
    a("s_lshl_b32 s33, s33, 13")
    a(f"s_add_u32 s36, s33, {WS_O}")
    a("s_add_u32 s37, s36, 4096")
    for ks in range(8):
        pack8(a, S0 + 4 * ks, OO + 8 * ks)
        a(f"buffer_store_dwordx4 {vr(S0 + 4 * ks)}, v{V_L16}, {sr(S_WS)}, s{36 + ks // 4} offen offset:{(ks % 4) * 1024}")


def gen_k2(a):
    L = "attn_kernel"
    kernel_begin(a, L)
    a("s_cmp_ge_u32 s2, 288")
    a("s_cbranch_scc1 K2_EXIT")
    a("s_load_dwordx2 s[46:47], s[0:1], 104")
    a("v_lshrrev_b32 v1, 6, v0")
    a(f"v_and_b32 v{V_LANE}, 63, v0")
    a(f"v_readfirstlane_b32 s{S_WAVE}, v1")
    a(f"v_lshlrev_b32 v{V_L16}, 4, v{V_LANE}")
    a("s_waitcnt lgkmcnt(0)")
    srd(a, S_WS, 46, WS_SIZE)
    a("s_cmp_ge_u32 s2, 256")
    a("s_cbranch_scc1 K2_B2")
    a("s_and_b32 s33, s2, 7")
    a("s_lshl_b32 s33, s33, 2")
    a("s_bfe_u32 s34, s2, 0x20003")
    a(f"s_add_u32 s{S_HEAD}, s33, s34")
    a(f"s_lshr_b32 s{S_P}, s2, 5")
    a(f"s_sub_u32 s33, 15, s{S_P}")
    a(f"s_cmp_ge_u32 s{S_WAVE}, 4")
    a(f"s_cselect_b32 s33, s33, s{S_P}")
    a(f"s_and_b32 s34, s{S_WAVE}, 3")
    a(f"s_lshl_b32 s{S_TG}, s33, 2")
    a(f"s_add_u32 s{S_TG}, s{S_TG}, s34")
    a(f"s_lshr_b32 s{S_TL}, s{S_TG}, 1")
    a(f"s_lshl_b32 s33, s{S_P}, 1")
    a(f"s_sub_u32 s{S_NT}, 32, s33")
    a(f"s_lshl_b32 s{S_M0}, s{S_WAVE}, 11")
    a(f"s_mov_b32 s{S_C}, 0x{SCALE_C:x}")
    a(f"v_add_u32 v{V_DMA}, s{S_M0}, v{V_L16}")
    a(f"s_lshl_b32 s33, s{S_HEAD}, 19")
    a(f"s_add_u32 s{S_KOFF}, s33, {WS_K}")
    a(f"s_add_u32 s{S_VOFF}, s33, {WS_V}")
    a(f"s_mov_b32 s{S_KLD}, 0")
    a(f"s_mov_b32 s{S_VLD}, 65536")
    if "stamp" in EXP:
        a("s_memtime s[70:71]")
        a("s_memrealtime s[72:73]")
    dma_k(a)
    a(f"s_lshl_b32 s36, s{S_HEAD}, 6")
    a(f"s_add_u32 s36, s36, s{S_TG}")
    a("s_lshl_b32 s36, s36, 13")
    for ds in range(4):
        a(f"buffer_load_dwordx4 {vr(QF + 4 * ds)}, v{V_L16}, {sr(S_WS)}, s36 offen offset:{ds * 1024}")
    a("s_add_u32 s36, s36, 4096")
    for ds in range(4):
        a(f"buffer_load_dwordx4 {vr(QF + 16 + 4 * ds)}, v{V_L16}, {sr(S_WS)}, s36 offen offset:{ds * 1024}")
    dma_k(a)
    dma_k(a)
    dma_v(a)
    dma_k(a)
    dma_v(a)
    a(f"v_and_b32 v{V_T}, 31, v{V_LANE}")
    a(f"v_lshrrev_b32 v{V_T + 1}, 5, v{V_LANE}")
    a(f"v_lshlrev_b32 v{V_T + 1}, 2, v{V_T + 1}")
    a(f"v_sub_u32 v{V_T}, v{V_T}, v{V_T + 1}")
    a(f"s_lshl_b32 s33, s{S_TG}, 5")
    a(f"v_add_u32 v{V_REL}, s33, v{V_T}")
    a(f"v_mov_b32 v{V_MC}, 0x{NEG_BIG:x}")
    a(f"v_mov_b32 v{V_NEG}, 0x{NEG_BIG:x}")
    a(f"v_mov_b32 v{V_L}, 0")
    a(f"v_mov_b32 v{V_EIGHT}, 0x41000000")
    for r in range(64):
        a(f"v_mov_b32 v{OO + r}, 0")
    a(f"s_mov_b32 s{S_T}, 0")
    a(f"s_mov_b32 s{S_KS}, 16384")
    a(f"s_mov_b32 s{S_VS}, 65536")
    a("s_waitcnt vmcnt(10)")
    a("s_barrier")
    for sub in range(2):
        for ds in range(8):
            a(f"ds_read_b128 {vr(FR + 4 * ds)}, v{V_L16} offset:{(sub * 8 + ds) * 1024}")
        for ds in range(8):
            a(f"s_waitcnt lgkmcnt({7 - ds})")
            mfma(a, S0 + 16 * sub, FR + 4 * ds, QF + 4 * ds, "0" if ds == 0 else None)
    a("s_nop 15")
    a(f"s_cmp_lg_u32 s{S_TL}, 0")
    a("s_cbranch_scc1 K2_PNM")
    mask(a, S0, 0)
    a.label("K2_PNM")
    for x in max16(V_M0, S0) + max16(V_T, S0 + 16, V_M0) + max_finish():
        a(x)
    rescale(a, "P")
    first = True
    for par in range(2):
        a.label(f"K2_IT{par}")
        header(a)
        addr_update(a)
        a(f"s_cmp_eq_u32 s{S_T}, s{S_TL}")
        a(f"s_cbranch_scc1 K2_FIN{par}")
        a(f"s_cmp_lg_u32 s{S_T}, 0")
        a(f"s_cbranch_scc1 K2_RA{par}")
        if par == 0:
            for i in range(D):
                a(frag_read(i))
        a.label(f"K2_RA{par}")
        a(f"s_add_u32 s33, s{S_T}, 1")
        a(f"s_cmp_eq_u32 s33, s{S_TL}")
        a(f"s_cbranch_scc1 K2_MSK{par}")
        body(a, par, False)
        advance(a)
        a(f"s_branch K2_IT{1 - par}")
        a.label(f"K2_MSK{par}")
        body(a, par, True)
        advance(a)
        a(f"s_branch K2_IT{1 - par}")
        a.label(f"K2_FIN{par}")
        final(a, par)
        a("s_branch K2_IDLE")
    a.label("K2_IDLE")
    a(f"s_add_u32 s{S_T}, s{S_T}, 1")
    a(f"s_cmp_ge_u32 s{S_T}, s{S_NT}")
    a("s_cbranch_scc1 K2_DONE")
    header(a)
    a("s_branch K2_IDLE")
    a.label("K2_DONE")
    if "stamp" in EXP:
        a("s_memtime s[74:75]")
        a("s_memrealtime s[76:77]")
        a("s_waitcnt lgkmcnt(0)")
        a("s_sub_u32 s74, s74, s70")
        a("s_sub_u32 s76, s76, s72")
        a("v_mov_b32 v12, s74")
        a("v_mov_b32 v13, s76")
        a("s_lshl_b32 s33, s2, 3")
        a(f"s_add_u32 s33, s33, s{S_WAVE}")
        a("s_lshl_b32 s33, s33, 3")
        a("s_add_u32 s33, s33, 0x6400000")
        a("v_mov_b32 v14, 0")
        a(f"buffer_store_dwordx2 v[12:13], v14, {sr(S_WS)}, s33 offen")
    a("s_endpgm")
    k2.gen_b2(a)
    a.label("K2_EXIT")
    a("s_endpgm")
    kernel_desc(a, L)
```

```python
from common import *
import k2, os
from k2 import f32, NEG_BIG
EXP = os.environ.get("K2EXP", "")

V_L16 = 2; V_LANE = 3
V_K = 4; V_KN = 5; V_V = 6; V_REL = 7; V_NEG = 10; V_DMA = 11
V_T = 12
V_M0 = 20; V_EIGHT = 21
ONES = 24; QF = 28; SX = 60; PF = 108; FR = 124; CB = 156; LB = 172; OO = 188

S_WS = 16; S_WAVE = 20; S_HEAD = 21; S_P = 22; S_TL = 23; S_NT = 24; S_T = 25
S_KS = 26; S_VS = 27; S_KLD = 28; S_VLD = 29
S_KOFF = 34; S_VOFF = 35; S_TG = 31; S_M0 = 32
D = 6
from k2b import dma_k, dma_v, addr_update, advance, max16
import k2b
assert (k2b.V_K, k2b.V_KN, k2b.V_V, k2b.V_DMA, k2b.V_L16) == (V_K, V_KN, V_V, V_DMA, V_L16)


def header(a, dma=True, extra=0):
    if "nohdr" in EXP:
        return
    a(f"s_waitcnt vmcnt({4 + extra})")
    a("s_barrier")
    if dma:
        dma_k(a)
        dma_v(a)


def dma_piece(j):
    if j == 0:
        return [f"s_add_u32 m0, s{S_KLD}, s{S_M0}",
                f"s_add_u32 s{S_KLD}, s{S_KLD}, 16384",
                f"buffer_load_dwordx4 v{V_DMA}, {sr(S_WS)}, s{S_KOFF} offen lds"]
    if j == 1:
        return [f"buffer_load_dwordx4 v{V_DMA}, {sr(S_WS)}, s{S_KOFF} offen offset:1024 lds",
                f"s_and_b32 s{S_KLD}, s{S_KLD}, 0xffff",
                f"s_add_u32 s{S_KOFF}, s{S_KOFF}, 16384"]
    if j == 2:
        return [f"s_add_u32 m0, s{S_VLD}, s{S_M0}",
                f"s_add_u32 s{S_VLD}, s{S_VLD}, 16384",
                f"buffer_load_dwordx4 v{V_DMA}, {sr(S_WS)}, s{S_VOFF} offen lds"]
    return [f"buffer_load_dwordx4 v{V_DMA}, {sr(S_WS)}, s{S_VOFF} offen offset:1024 lds",
            f"s_cmp_eq_u32 s{S_VLD}, {65536 + 49152}",
            f"s_cselect_b32 s{S_VLD}, 65536, s{S_VLD}",
            f"s_add_u32 s{S_VOFF}, s{S_VOFF}, 16384"]


DGAPS = [int(x) for x in os.environ.get("DGAPS", "6,13,20,27").split(",")]


def frag_read(i):
    slot = FR + 4 * (i % 8)
    if i >= 32:
        return f"ds_read_b128 {vr(slot)}, v{V_KN} offset:{(i - 32) * 1024}"
    g, k = divmod(i, 8)
    if g == 0:
        return f"ds_read_b128 {vr(slot)}, v{V_K} offset:{k * 1024}"
    if g == 2:
        return f"ds_read_b128 {vr(slot)}, v{V_K} offset:{(8 + k) * 1024}"
    f = (0 if g == 1 else 2) + k // 4
    return f"ds_read_b128 {vr(slot)}, v{V_V} offset:{(f * 4 + k % 4) * 1024}"


def mfma_str(i, N0, N1):
    slot = FR + 4 * (i % 8)
    g, k = divmod(i, 8)
    if g in (0, 2):
        d = N0 if g == 0 else N1
        c = vr(CB, 16) if k == 0 else vr(d, 16)
        return f"v_mfma_f32_32x32x16_bf16 {vr(d, 16)}, {vr(slot)}, {vr(QF + 4 * k)}, {c}"
    f = (0 if g == 1 else 2) + k // 4
    d = OO + 16 * (k % 4)
    return f"v_mfma_f32_32x32x16_bf16 {vr(d, 16)}, {vr(slot)}, {vr(PF + 4 * f)}, {vr(d, 16)}"


def sum_mfma(f):
    return f"v_mfma_f32_32x32x16_bf16 {vr(LB, 16)}, {vr(ONES)}, {vr(PF + 4 * f)}, {vr(LB, 16)}"


def adds(base):
    return [f"v_pk_add_f32 {vr(LB + 2 * (q & 1), 2)}, {vr(LB + 2 * (q & 1), 2)}, {vr(base + 2 * q, 2)}" for q in range(8)]


def exp_block(base, f, wadd=False):
    o = [f"v_exp_f32 v{base + r}, v{base + r}" for r in range(8)]
    for q in range(4):
        o.append(f"v_cvt_pk_bf16_f32 v{PF + 4 * f + q}, v{base + 2 * q}, v{base + 2 * q + 1}")
        if wadd:
            o.append(f"v_pk_add_f32 {vr(LB + 2 * (q & 1), 2)}, {vr(LB + 2 * (q & 1), 2)}, {vr(base + 2 * q, 2)}")
    return o


def rescale(a, tag, N0, N1, force=False):
    if not force:
        a("s_nop 4")
        a(f"s_cbranch_vccz K2_NR{tag}")
    a("s_nop 15")
    a(f"v_mov_b32 v{V_T + 1}, v{V_T}")
    a("s_nop 1")
    a(f"v_permlane32_swap_b32 v{V_T}, v{V_T + 1}")
    a("s_nop 1")
    a(f"v_max_f32 v{V_T}, v{V_T}, v{V_T + 1}")
    if not force:
        a(f"v_max_f32 v{V_T}, 0, v{V_T}")
    a(f"v_sub_f32 v{V_T + 1}, 0, v{V_T}")
    a(f"v_exp_f32 v{V_T + 1}, v{V_T + 1}")
    for r in range(16):
        a(f"v_sub_f32 v{N0 + r}, v{N0 + r}, v{V_T}")
        a(f"v_sub_f32 v{N1 + r}, v{N1 + r}, v{V_T}")
        a(f"v_sub_f32 v{CB + r}, v{CB + r}, v{V_T}")
    if not force:
        for r in range(4):
            a(f"v_mul_f32 v{LB + r}, v{LB + r}, v{V_T + 1}")
        for r in range(64):
            a(f"v_mul_f32 v{OO + r}, v{OO + r}, v{V_T + 1}")
    a("s_nop 1")
    if not force:
        a.label(f"K2_NR{tag}")


def mask(a, N0, N1, toff):
    a(f"s_add_u32 s33, s{S_T}, {toff}")
    a("s_lshl_b32 s33, s33, 6")
    a(f"v_subrev_u32 v{V_T}, s33, v{V_REL}")
    for sub in range(2):
        for g in range(4):
            for i in range(4):
                a(f"v_cmp_gt_i32 s[{60 + 2 * i}:{61 + 2 * i}], {32 * sub + 8 * g + i}, v{V_T}")
            a("s_nop 1")
            for i in range(4):
                r = (N0 if sub == 0 else N1) + 4 * g + i
                a(f"v_cndmask_b32 v{r}, v{r}, v{V_NEG}, s[{60 + 2 * i}:{61 + 2 * i}]")


def bufs(ph):
    X, Y, Z = SX, SX + 16, SX + 32
    return [((X, Y), (Z, X)), ((Z, X), (Y, Z)), ((Y, Z), (X, Y))][ph]


def body(a, ph, masked):
    (A0, A1), (N0, N1) = bufs(ph)
    cmpi = [f"v_cmp_gt_f32 vcc, v{V_T}, v{V_EIGHT}"]
    fl = [exp_block(A0, 0) + exp_block(A0 + 8, 1),
          exp_block(A1, 2) + adds(A0),
          exp_block(A1 + 8, 3) + (max16(V_M0, N0) if not masked else []),
          None]
    for i in range(32):
        g, k = divmod(i, 8)
        if i % 2 == 0 and "nods" not in EXP:
            a(f"s_waitcnt lgkmcnt({D - 2})")
        if "nomfma" not in EXP:
            a(mfma_str(i, N0, N1))
        if "nods" not in EXP:
            a(frag_read(i + D))
        if i in DGAPS and "nohdr" not in EXP:
            for x in dma_piece(DGAPS.index(i)):
                a(x)
        if "novalu" in EXP:
            pass
        elif g < 3:
            n = len(fl[g])
            for x in fl[g][k * n // 8:(k + 1) * n // 8]:
                a(x)
        elif k < 3:
            for x in adds(A1)[3 * k:3 * k + 3]:
                a(x)
        elif not masked and k >= 3:
            mx = max16(V_T, N1, V_M0) + cmpi
            n = len(mx)
            for x in mx[(k - 3) * n // 5:(k - 2) * n // 5]:
                a(x)
    if masked:
        a("s_nop 7")
        mask(a, N0, N1, 1)
        for x in max16(V_M0, N0) + max16(V_T, N1, V_M0) + cmpi:
            a(x)
    rescale(a, f"B{ph}{int(masked)}", N0, N1)


def final(a, ph):
    (A0, A1), _ = bufs(ph)
    a("s_waitcnt lgkmcnt(0)")
    for f, b in enumerate((A0, A0 + 8, A1, A1 + 8)):
        for x in exp_block(b, f, True):
            a(x)
    for half in range(2):
        k = 0
        for f in range(2 * half, 2 * half + 2):
            for dt in range(4):
                a(f"ds_read_b128 {vr(FR + 4 * k)}, v{V_V} offset:{(f * 4 + dt) * 1024}")
                k += 1
        k = 0
        for f in range(2 * half, 2 * half + 2):
            for dt in range(4):
                a(f"s_waitcnt lgkmcnt({7 - k})")
                mfma(a, OO + 16 * dt, FR + 4 * k, PF + 4 * f)
                k += 1
    a(f"v_add_f32 v{LB}, v{LB}, v{LB + 1}")
    a(f"v_add_f32 v{LB + 2}, v{LB + 2}, v{LB + 3}")
    a(f"v_add_f32 v{LB}, v{LB}, v{LB + 2}")
    a(f"v_mov_b32 v{LB + 1}, v{LB}")
    a("s_nop 1")
    a(f"v_permlane32_swap_b32 v{LB}, v{LB + 1}")
    a("s_nop 1")
    a(f"v_add_f32 v{LB}, v{LB}, v{LB + 1}")
    a("s_nop 15")
    a(f"v_rcp_f32 v{V_T}, v{LB}")
    a("s_nop 0")
    for r in range(64):
        a(f"v_mul_f32 v{OO + r}, v{OO + r}, v{V_T}")
    a(f"s_lshl_b32 s33, s{S_TG}, 5")
    a(f"s_add_u32 s33, s33, s{S_HEAD}")
    a("s_lshl_b32 s33, s33, 13")
    a(f"s_add_u32 s36, s33, {WS_O}")
    a("s_add_u32 s37, s36, 4096")
    for ks in range(8):
        pack8(a, SX + 4 * ks, OO + 8 * ks)
        a(f"buffer_store_dwordx4 {vr(SX + 4 * ks)}, v{V_L16}, {sr(S_WS)}, s{36 + ks // 4} offen offset:{(ks % 4) * 1024} sc1")


def b2_steps(a):
    AC = 24; AF = 40; LD = 64; BF = 64; DD = 128; PB = 192
    T = V_T

    def it(extra):
        a(f"s_add_u32 s{S_T}, s{S_T}, 1")
        header(a, True, extra)
        a("s_waitcnt vmcnt(4)")

    def kv_loads(q0):
        for q in range(q0, q0 + 2):
            for p in range(16):
                a(f"s_add_u32 s33, s38, {p * 32 * 4096}")
                a(f"buffer_load_dwordx4 {vr(LD + 64 * (q - q0) + 4 * p)}, v{V_L16}, {sr(S_WS)}, s33 offen offset:{q * 1024}")

    def kv_sum(q0):
        for q in range(q0, q0 + 2):
            b = LD + 64 * (q - q0)
            for i in (0, 2):
                a(f"v_pk_add_f32 {vr(AC + 4 * q + i, 2)}, {vr(b + i, 2)}, {vr(b + 4 + i, 2)}")
            for p in range(2, 16):
                for i in (0, 2):
                    a(f"v_pk_add_f32 {vr(AC + 4 * q + i, 2)}, {vr(AC + 4 * q + i, 2)}, {vr(b + 4 * p + i, 2)}")

    def pq_loads(bt):
        for i in range(4):
            a(f"s_add_u32 s33, s39, {(bt * 4 + i) * 2048}")
            a(f"buffer_load_dwordx4 {vr(BF + 8 * i)}, v{V_L16}, {sr(S_WS)}, s33 offen")
            a(f"buffer_load_dwordx4 {vr(BF + 8 * i + 4)}, v{V_L16}, {sr(S_WS)}, s33 offen offset:1024")

    def proc(bt):
        for i in range(4):
            d = DD + 16 * i
            mfma(a, d, AF, BF + 8 * i, "0")
            mfma(a, d, AF + 4, BF + 8 * i + 4)
        a("s_nop 15")
        for i in range(4):
            d = DD + 16 * i
            a(f"v_cndmask_b32 v{T}, v{d + 8}, v{d}, s[60:61]")
            for r in range(8):
                a(f"v_cndmask_b32 v{d + r}, v{d + r}, v{d + 8 + r}, s[60:61]")
            bf16_round(a, T, T)
            a(f"v_add_f32 v{T}, v{T}, v{T + 4}")
            bf16_round(a, T, T)
            a(f"v_rcp_f32 v{T}, v{T}")
            for r in range(8):
                bf16_round(a, d + r, d + r)
            for r in range(8):
                a(f"v_mul_f32 v{d + r}, v{d + r}, v{T}")
            pack8(a, PB + 4 * i, d)
            a(f"s_add_u32 s33, s40, {(bt * 4 + i) * 32768}")
            a(f"buffer_store_dwordx4 {vr(PB + 4 * i)}, v{V_L16}, {sr(S_WS)}, s33 offen sc1")

    a.label("K2_B2W")
    a("s_mov_b32 s43, 1")
    a(f"s_lshl_b32 s38, s{S_HEAD}, 12")
    a(f"s_add_u32 s38, s38, {WS_KVP}")
    a(f"s_sub_u32 s41, s{S_P}, {B2P}")
    a("s_lshl_b32 s41, s41, 2")
    a(f"s_add_u32 s41, s41, s{S_WAVE}")
    a("s_lshl_b32 s41, s41, 3")
    a(f"s_lshl_b32 s39, s{S_HEAD}, 6")
    a("s_add_u32 s39, s39, s41")
    a("s_lshl_b32 s39, s39, 11")
    a(f"s_add_u32 s39, s39, {WS_PQ}")
    a("s_lshl_b32 s40, s41, 5")
    a(f"s_add_u32 s40, s40, s{S_HEAD}")
    a("s_lshl_b32 s40, s40, 10")
    a(f"s_add_u32 s40, s40, {WS_OB}")
    a(f"s_and_b32 s33, s{S_HEAD}, 1")
    a("s_cmp_eq_u32 s33, 1")
    a("s_cselect_b64 s[60:61], -1, 0")
    a(f"v_mov_b32 v{T + 4}, 0x{f32(1e-6):x}")
    it(8)
    kv_loads(0)
    it(32)
    kv_sum(0)
    kv_loads(2)
    it(32)
    kv_sum(2)
    pack8(a, AF, AC)
    pack8(a, AF + 4, AC + 8)
    pq_loads(0)
    for bt in range(2):
        it(12)
        proc(bt)
        if bt < 1:
            pq_loads(bt + 1)
    a("s_branch K2_IDLE")


B2P = 5
WS_F = 74 << 20


def signal(a, tag):
    a("s_cmp_lg_u32 s42, 0")
    a(f"s_cbranch_scc1 K2_SG{tag}")
    a("s_waitcnt vmcnt(0)")
    a(f"s_lshr_b32 s33, s{S_TG}, 2")
    a("s_lshl_b32 s33, s33, 8")
    a(f"s_add_u32 s33, s33, {WS_F + 128}")
    a(f"v_mov_b32 v{V_T}, 0")
    a(f"v_mov_b32 v{V_T + 1}, 1")
    a("s_mov_b64 exec, 1")
    a(f"buffer_atomic_add v{V_T + 1}, v{V_T}, {sr(S_WS)}, s33 offen sc1")
    a("s_cmp_eq_u32 s43, 0")
    a(f"s_cbranch_scc1 K2_SH{tag}")
    a(f"s_mov_b32 s33, {WS_F + 128 + 16 * 256}")
    a(f"buffer_atomic_add v{V_T + 1}, v{V_T}, {sr(S_WS)}, s33 offen sc1")
    a.label(f"K2_SH{tag}")
    a("s_mov_b64 exec, -1")
    a("s_mov_b32 s42, 1")
    a.label(f"K2_SG{tag}")


def gen_k2(a):
    L = "attn_kernel"
    kernel_begin(a, L)
    a("s_cmp_ge_u32 s2, 256")
    a("s_cbranch_scc1 K2_EXIT")
    a("s_load_dwordx2 s[46:47], s[0:1], 104")
    a("s_load_dwordx2 s[84:85], s[0:1], 40")
    a("s_load_dwordx2 s[86:87], s[0:1], 72")
    a("s_load_dwordx2 s[88:89], s[0:1], 88")
    a("v_lshrrev_b32 v1, 6, v0")
    a(f"v_and_b32 v{V_LANE}, 63, v0")
    a(f"v_readfirstlane_b32 s{S_WAVE}, v1")
    a(f"v_lshlrev_b32 v{V_L16}, 4, v{V_LANE}")
    a("s_waitcnt lgkmcnt(0)")
    srd(a, S_WS, 46, WS_SIZE)
    srd(a, 8, 84, 4096 * 512 * 2)
    srd(a, 12, 86, 512 * 512 * 2)
    a("s_and_b32 s33, s2, 7")
    a("s_lshl_b32 s33, s33, 2")
    a("s_bfe_u32 s34, s2, 0x20003")
    a(f"s_add_u32 s{S_HEAD}, s33, s34")
    a(f"s_lshr_b32 s{S_P}, s2, 5")
    a(f"s_sub_u32 s33, 15, s{S_P}")
    a(f"s_cmp_ge_u32 s{S_WAVE}, 4")
    a(f"s_cselect_b32 s33, s33, s{S_P}")
    a(f"s_and_b32 s34, s{S_WAVE}, 3")
    a(f"s_lshl_b32 s{S_TG}, s33, 2")
    a(f"s_add_u32 s{S_TG}, s{S_TG}, s34")
    a(f"s_lshr_b32 s{S_TL}, s{S_TG}, 1")
    a(f"s_lshl_b32 s33, s{S_P}, 1")
    a(f"s_sub_u32 s{S_NT}, 32, s33")
    a(f"s_lshl_b32 s{S_M0}, s{S_WAVE}, 11")
    a(f"v_add_u32 v{V_DMA}, s{S_M0}, v{V_L16}")
    a(f"s_mul_i32 s33, s{S_HEAD}, {(1 << 19) + HPAD}")
    if "samehead" in EXP:
        a("s_mov_b32 s33, 0")
    if "xcdhead" in EXP:
        a("s_and_b32 s33, s2, 7")
        a("s_lshl_b32 s33, s33, 19")
    a(f"s_add_u32 s{S_KOFF}, s33, {WS_K2}")
    a(f"s_add_u32 s{S_VOFF}, s33, {WS_V2}")
    a(f"s_mov_b32 s{S_KLD}, 0")
    a(f"s_mov_b32 s{S_VLD}, 65536")
    if "stamp" in EXP:
        a("s_memtime s[70:71]")
        a("s_memrealtime s[72:73]")
    dma_k(a)
    a(f"s_lshl_b32 s36, s{S_HEAD}, 6")
    a(f"s_add_u32 s36, s36, s{S_TG}")
    a("s_lshl_b32 s36, s36, 13")
    for ds in range(4):
        a(f"buffer_load_dwordx4 {vr(QF + 4 * ds)}, v{V_L16}, {sr(S_WS)}, s36 offen offset:{ds * 1024}")
    a("s_add_u32 s36, s36, 4096")
    for ds in range(4):
        a(f"buffer_load_dwordx4 {vr(QF + 16 + 4 * ds)}, v{V_L16}, {sr(S_WS)}, s36 offen offset:{ds * 1024}")
    dma_k(a); dma_k(a); dma_v(a); dma_k(a); dma_v(a)
    a(f"v_and_b32 v{V_T}, 31, v{V_LANE}")
    a(f"v_lshrrev_b32 v{V_T + 1}, 5, v{V_LANE}")
    a(f"v_lshlrev_b32 v{V_T + 1}, 2, v{V_T + 1}")
    a(f"v_sub_u32 v{V_T}, v{V_T}, v{V_T + 1}")
    a(f"s_lshl_b32 s33, s{S_TG}, 5")
    a(f"v_add_u32 v{V_REL}, s33, v{V_T}")
    a(f"v_mov_b32 v{V_NEG}, 0x{NEG_BIG:x}")
    a(f"v_mov_b32 v{V_EIGHT}, 0x41000000")
    for r in range(4):
        a(f"v_mov_b32 v{ONES + r}, 0x3f803f80")
    for r in range(64):
        a(f"v_mov_b32 v{OO + r}, 0")
    for r in range(16):
        a(f"v_mov_b32 v{CB + r}, 0")
        a(f"v_mov_b32 v{LB + r}, 0")
    a(f"s_mov_b32 s{S_T}, 0")
    a("s_mov_b32 s42, 0")
    a("s_mov_b32 s43, 0")
    a(f"s_mov_b32 s{S_KS}, 16384")
    a(f"s_mov_b32 s{S_VS}, 65536")
    a("s_waitcnt vmcnt(10)")
    a("s_barrier")
    (A0, A1), _ = bufs(0)
    for sub in range(2):
        for ds in range(8):
            a(f"ds_read_b128 {vr(FR + 4 * ds)}, v{V_L16} offset:{(sub * 8 + ds) * 1024}")
        for ds in range(8):
            a(f"s_waitcnt lgkmcnt({7 - ds})")
            mfma(a, (A0, A1)[sub], FR + 4 * ds, QF + 4 * ds, "0" if ds == 0 else None)
    a("s_nop 15")
    a(f"s_cmp_lg_u32 s{S_TL}, 0")
    a("s_cbranch_scc1 K2_PNM")
    mask(a, A0, A1, 0)
    a.label("K2_PNM")
    for x in max16(V_M0, A0) + max16(V_T, A1, V_M0):
        a(x)
    rescale(a, "P", A0, A1, force=True)
    for ph in range(3):
        a.label(f"K2_IT{ph}")
        header(a, False)
        addr_update(a)
        a(f"s_cmp_eq_u32 s{S_T}, s{S_TL}")
        a(f"s_cbranch_scc1 K2_FIN{ph}")
        if ph == 0:
            a(f"s_cmp_lg_u32 s{S_T}, 0")
            a(f"s_cbranch_scc1 K2_RA{ph}")
            for i in range(D):
                a(frag_read(i))
            a.label(f"K2_RA{ph}")
        a(f"s_add_u32 s33, s{S_T}, 1")
        a(f"s_cmp_eq_u32 s33, s{S_TL}")
        a(f"s_cbranch_scc1 K2_MSK{ph}")
        body(a, ph, False)
        advance(a)
        a(f"s_branch K2_IT{(ph + 1) % 3}")
        a.label(f"K2_MSK{ph}")
        body(a, ph, True)
        advance(a)
        a(f"s_branch K2_IT{(ph + 1) % 3}")
        a.label(f"K2_FIN{ph}")
        if "nohdr" not in EXP:
            dma_k(a)
            dma_v(a)
        final(a, ph)
        a("s_branch K2_POST")
    b2_steps(a)
    a.label("K2_POST")
    a(f"s_cmp_ge_u32 s{S_WAVE}, 4")
    a("s_cbranch_scc1 K2_IDLE")
    a(f"s_sub_u32 s33, s{S_P}, {B2P}")
    a("s_cmp_lt_u32 s33, 2")
    a("s_cbranch_scc1 K2_B2W")
    a.label("K2_IDLE")
    a(f"s_add_u32 s{S_T}, s{S_T}, 1")
    a(f"s_cmp_ge_u32 s{S_T}, s{S_NT}")
    a("s_cbranch_scc1 K2_DONE")
    a("s_cmp_lg_u32 s42, 0")
    a("s_cbranch_scc1 K2_W4")
    a("s_waitcnt vmcnt(8)")
    a("s_branch K2_W5")
    a.label("K2_W4")
    a("s_waitcnt vmcnt(4)")
    a.label("K2_W5")
    a("s_barrier")
    signal(a, "A")
    dma_k(a)
    dma_v(a)
    a("s_branch K2_IDLE")
    a.label("K2_DONE")
    signal(a, "B")
    if "stamp" in EXP:
        a("s_memtime s[74:75]")
        a("s_memrealtime s[76:77]")
        a("s_waitcnt lgkmcnt(0)")
        a("s_sub_u32 s74, s74, s70")
        a("s_sub_u32 s76, s76, s72")
        a("v_mov_b32 v12, s74")
        a("v_mov_b32 v13, s76")
        a("s_lshl_b32 s33, s2, 3")
        a(f"s_add_u32 s33, s33, s{S_WAVE}")
        a("s_lshl_b32 s33, s33, 3")
        a("s_add_u32 s33, s33, 0xC900000")
        a("v_mov_b32 v14, 0")
        a(f"buffer_store_dwordx2 v[12:13], v14, {sr(S_WS)}, s33 offen")
    a("s_branch K3_ENTRY")
    a.label("K2_EXIT")
    a("s_endpgm")
```

```python
from common import *
import os
K3S = os.environ.get("K3S", "")

V_L16 = 2
V_LANE = 3
V_WD = 4
V_WA = 6
V_T = 10
CF = 32
WF = 72
ACA = 128
ACB = 192

S_WS = 16
S_WO = 8
S_WB = 12
S_X = 52
S_G = 56
S_OUT = 64
S_WAVE = 20
S_MT = 21
S_NT = 22
S_M0 = 23
S_CA = 24
S_WAOFF = 25
S_CB = 26
S_WBOFF = 27

DEPTH = 4
NL = int(os.environ.get("K3NL", "4"))
NSTEP = 36


def issue_step(a, s):
    slot = s % 8
    cf = CF + 8 * (s % 5)
    if s < 32:
        a(f"s_add_u32 s30, s{S_WAOFF}, {s * 16 * 1024}")
        wsrd = S_WO
    else:
        a(f"s_add_u32 s30, s{S_WBOFF}, {(s - 32) * 16 * 1024}")
        wsrd = S_WB
    for i in range(2):
        a(f"s_add_u32 m0, s{S_M0}, {slot * 2048 + i * 1024}")
        a("s_nop 0")
        a(f"buffer_load_dwordx4 v{V_WD + i}, {sr(wsrd)}, s30 offen lds")
    for tgl in range(NL - 2):
        if s < 32:
            a(f"s_add_u32 s31, s{S_CA}, {tgl * 32 * 8192 + s * 1024}")
        else:
            a(f"s_add_u32 s31, s{S_CB}, {tgl * 32 * 1024 + (s - 32) * 1024}")
        a(f"buffer_load_dwordx4 {vr(cf + 4 * tgl)}, v{V_L16}, {sr(S_WS)}, s31 offen")


def read_w(a, s):
    slot = s % 8
    wf = WF + 8 * (s % 2)
    for j in range(2):
        for g in range(2):
            a(f"ds_read_b64_tr_b16 {vr(wf + 4 * j + 2 * g, 2)}, v{V_WA + j} offset:{slot * 2048 + g * 1024}")


def gen_k3(a):
    L = "out_kernel"
    kernel_begin(a, L)
    a("s_cmp_ge_u32 s2, 256")
    a("s_cbranch_scc1 K3_EXIT")
    if K3S:
        a("s_memtime s[70:71]")
        a("s_memrealtime s[78:79]")
    a("s_load_dwordx2 s[36:37], s[0:1], 0")
    a("s_load_dwordx2 s[38:39], s[0:1], 40")
    a("s_load_dwordx4 s[40:43], s[0:1], 72")
    a("s_load_dwordx2 s[44:45], s[0:1], 88")
    a("s_load_dwordx2 s[46:47], s[0:1], 104")
    a("v_lshrrev_b32 v1, 6, v0")
    a(f"v_and_b32 v{V_LANE}, 63, v0")
    a(f"v_readfirstlane_b32 s{S_WAVE}, v1")
    a(f"v_lshlrev_b32 v{V_L16}, 4, v{V_LANE}")
    a("s_waitcnt lgkmcnt(0)")
    srd(a, S_WS, 46, WS_SIZE)
    srd(a, S_WO, 38, 4096 * 512 * 2)
    srd(a, S_WB, 40, 512 * 512 * 2)
    srd(a, S_X, 36, 2048 * 512 * 2)
    srd(a, S_G, 42, 512 * 2)
    srd(a, S_OUT, 44, 2048 * 512 * 2)
    a("s_and_b32 s30, s2, 7")
    a("s_lshr_b32 s31, s2, 3")
    a("s_lshl_b32 s30, s30, 2")
    a("s_and_b32 s32, s31, 3")
    a(f"s_add_u32 s{S_MT}, s30, s32")
    a(f"s_lshr_b32 s{S_NT}, s31, 2")
    a(f"s_lshl_b32 s{S_M0}, s{S_WAVE}, 14")
    a(f"s_lshl_b32 s30, s{S_MT}, 19")
    a(f"s_lshl_b32 s31, s{S_WAVE}, 15")
    a("s_add_u32 s30, s30, s31")
    a(f"s_add_u32 s{S_CA}, s30, {WS_O}")
    a(f"s_lshl_b32 s{S_WAOFF}, s{S_WAVE}, 19")
    a(f"s_lshl_b32 s30, s{S_MT}, 16")
    a(f"s_lshl_b32 s31, s{S_WAVE}, 12")
    a("s_add_u32 s30, s30, s31")
    a(f"s_add_u32 s{S_CB}, s30, {WS_OB}")
    a(f"s_lshl_b32 s{S_WBOFF}, s{S_WAVE}, 16")
    T = V_T
    lane = V_LANE
    a(f"v_lshrrev_b32 v{T}, 3, v{lane}")
    a(f"v_bfe_u32 v{T + 1}, v{lane}, 4, 1")
    a(f"v_bfe_u32 v{T + 2}, v{lane}, 2, 1")
    a(f"v_xor_b32 v{T + 1}, v{T + 1}, v{T + 2}")
    a(f"v_and_b32 v{T + 2}, 3, v{lane}")
    a(f"v_lshl_add_u32 v{T + 1}, v{T + 1}, 2, v{T + 2}")
    a(f"v_lshlrev_b32 v{T + 1}, 4, v{T + 1}")
    a(f"v_lshl_add_u32 v{T + 1}, v{T}, 10, v{T + 1}")
    a(f"s_lshl_b32 s30, s{S_NT}, 7")
    a(f"v_add_u32 v{V_WD}, s30, v{T + 1}")
    a(f"v_add_u32 v{V_WD + 1}, 0x2000, v{V_WD}")
    a(f"v_lshrrev_b32 v{T}, 5, v{lane}")
    a(f"v_bfe_u32 v{T + 1}, v{lane}, 2, 2")
    a(f"v_lshl_add_u32 v{T}, v{T}, 2, v{T + 1}")
    a(f"v_lshlrev_b32 v{T}, 7, v{T}")
    a(f"v_bfe_u32 v{T + 2}, v{lane}, 4, 1")
    a(f"v_lshl_add_u32 v{T}, v{T + 2}, 5, v{T}")
    a(f"v_and_b32 v{T + 2}, 3, v{lane}")
    a(f"v_lshl_add_u32 v{T}, v{T + 2}, 3, v{T}")
    a(f"v_add_u32 v{T}, s{S_M0}, v{T}")
    a(f"v_bfe_u32 v{T + 1}, v{lane}, 3, 1")
    for j in range(2):
        a(f"v_xor_b32 v{T + 2}, {j}, v{T + 1}")
        a(f"v_lshl_add_u32 v{V_WA + j}, v{T + 2}, 6, v{T}")
    a("v_lshrrev_b32 v8, 3, v0")
    a("v_lshlrev_b32 v8, 2, v8")
    a(f"s_lshl_b32 s30, s{S_MT}, 8")
    a(f"s_add_u32 s30, s30, {WS_G}")
    a(f"buffer_load_dword v8, v8, {sr(S_WS)}, s30 offen")
    for s in range(DEPTH):
        issue_step(a, s)
    a(f"s_waitcnt vmcnt({NL * (DEPTH - 1)})")
    if K3S:
        a("s_memtime s[72:73]")
    read_w(a, 0)
    for s in range(NSTEP):
        if s + DEPTH < NSTEP:
            issue_step(a, s + DEPTH)
        if s + 1 < NSTEP:
            n_after = min(s + DEPTH, NSTEP - 1) - (s + 1)
            a(f"s_waitcnt vmcnt({NL * n_after})")
            read_w(a, s + 1)
            a("s_waitcnt lgkmcnt(4)")
        else:
            a("s_waitcnt lgkmcnt(0)")
        cf = CF + 8 * (s % 5)
        wf = WF + 8 * (s % 2)
        acc = ACA if s < 32 else ACB
        c = "0" if s in (0, 32) else None
        for tgl in range(2):
            for j in range(2):
                mfma(a, acc + 16 * (tgl * 2 + j), wf + 4 * j, cf + 4 * tgl, c)
    if K3S:
        a("s_memtime s[74:75]")
    a("s_barrier")
    a(f"v_and_b32 v{T}, 31, v{lane}")
    a(f"v_mul_u32_u24 v{T}, 272, v{T}")
    a(f"v_lshrrev_b32 v{T + 1}, 5, v{lane}")
    a(f"v_lshl_add_u32 v{T}, v{T + 1}, 4, v{T}")
    a(f"s_mul_i32 s30, s{S_WAVE}, 17408")
    a(f"v_add_u32 v{T}, s30, v{T}")
    a(f"v_lshrrev_b32 v{T + 1}, 3, v0")
    a(f"v_mul_u32_u24 v{T + 2}, 272, v{T + 1}")
    a(f"v_and_b32 v{T + 3}, 7, v0")
    a(f"v_lshl_add_u32 v{T + 2}, v{T + 3}, 5, v{T + 2}")
    RS = 32
    for rnd, acc in enumerate((ACA, ACB)):
        for tgl in range(2):
            for j in range(2):
                for g in range(4):
                    a(f"ds_write_b128 v{T}, {vr(acc + 16 * (tgl * 2 + j) + 4 * g)} offset:{tgl * 32 * 272 + (32 * j + 8 * g) * 4}")
        a("s_waitcnt lgkmcnt(0)")
        a("s_barrier")
        for w in range(8):
            a(f"v_add_u32 v{T + 4}, {w * 17408}, v{T + 2}")
            a(f"ds_read_b128 {vr(48 + 8 * w)}, v{T + 4}")
            a(f"ds_read_b128 {vr(48 + 8 * w + 4)}, v{T + 4} offset:16")
        a("s_waitcnt lgkmcnt(0)")
        for e in range(8):
            a(f"v_add_f32 v{RS + 8 * rnd + e}, v{48 + e}, v{56 + e}")
            for w in range(2, 8):
                a(f"v_add_f32 v{RS + 8 * rnd + e}, v{RS + 8 * rnd + e}, v{48 + 8 * w + e}")
        a("s_barrier")
    a(f"v_mov_b32 v{T + 5}, v8")
    a(f"v_sub_f32 v{T + 6}, 1.0, v{T + 5}")
    bf16_round(a, T + 6, T + 6)
    for e in range(16):
        bf16_round(a, RS + e, RS + e)
    for e in range(8):
        a(f"v_mul_f32 v{RS + e}, v{RS + e}, v{T + 5}")
        a(f"v_mul_f32 v{RS + 8 + e}, v{RS + 8 + e}, v{T + 6}")
    for e in range(16):
        bf16_round(a, RS + e, RS + e)
    for e in range(8):
        a(f"v_add_f32 v{RS + e}, v{RS + e}, v{RS + 8 + e}")
    pack8(a, 48, RS)
    a(f"v_lshlrev_b32 v{T + 4}, 10, v{T + 1}")
    a(f"v_lshl_add_u32 v{T + 4}, v{T + 3}, 4, v{T + 4}")
    a(f"s_lshl_b32 s30, s{S_MT}, 16")
    a(f"s_lshl_b32 s31, s{S_NT}, 7")
    a("s_add_u32 s30, s30, s31")
    a(f"buffer_store_dwordx4 {vr(48)}, v{T + 4}, {sr(S_OUT)}, s30 offen")
    if K3S:
        a("s_waitcnt vmcnt(0)")
        a("s_memtime s[76:77]")
        a("s_waitcnt lgkmcnt(0)")
        a("s_sub_u32 s72, s72, s70")
        a("s_sub_u32 s74, s74, s70")
        a("s_sub_u32 s76, s76, s70")
        a("v_mov_b32 v12, s78")
        a("v_mov_b32 v13, s72")
        a("v_mov_b32 v14, s74")
        a("v_mov_b32 v15, s76")
        a("s_lshl_b32 s33, s2, 3")
        a(f"s_add_u32 s33, s33, s{S_WAVE}")
        a("s_lshl_b32 s33, s33, 4")
        a("s_add_u32 s33, s33, 0x6400000")
        a("v_mov_b32 v16, 0")
        a(f"buffer_store_dwordx4 v[12:15], v16, {sr(S_WS)}, s33 offen")
    a.label("K3_EXIT")
    a("s_endpgm")
    kernel_desc(a, L)
```

```python
from common import *
import os
K3S = os.environ.get("K3S", "")
K3ST = os.environ.get("K3ST", "sc1")
K3LD = os.environ.get("K3LD", "sc1")

WS_P = 80 << 20
WS_F = 74 << 20

V_L16 = 2; V_LANE = 3; V_WD = 4; V_G = 5
V_CA = 6
V_WA = 10
V_T = 14
FRG = 32
ACA = 64
ACB = 128
PL = 192

S_WS = 16; S_WO = 8; S_WB = 12; S_OUT = 64
S_WAVE = 20; S_MT = 21; S_NT = 22; S_KS = 23; S_TILE = 24
S_M0 = 25
S_CO = 26; S_WOF = 27
S_CB = 28; S_WBF = 29
NP = int(os.environ.get('K3NP', '19'))
NA = 64 - 3 * NP


S_IDX = 48; S_CBASE = 49; S_WBASE = 50; S_NWRAP = 51


def pieces(st, fin):
    slot = (st & 3) * 32768
    isb = fin and st >= NA
    pre = []
    if isb and st == NA:
        pre = [f"s_mov_b32 s{S_CBASE}, s{S_CB}", f"s_mov_b32 s{S_WBASE}, s{S_WBF}",
               f"s_and_b32 s{S_IDX}, s{S_IDX}, 7", f"s_mov_b32 s{S_NWRAP}, 8"]
    wsrd = S_WB if isb else S_WO
    pre += [f"s_lshl_b32 s30, s{S_IDX}, 12",
            f"s_add_u32 s{S_CO}, s{S_CBASE}, s30",
            f"s_lshl_b32 s30, s{S_IDX}, 16",
            f"s_add_u32 s{S_WOF}, s{S_WBASE}, s30",
            f"s_add_u32 s{S_IDX}, s{S_IDX}, 1",
            f"s_cmp_eq_u32 s{S_IDX}, s{S_NWRAP}",
            f"s_cselect_b32 s{S_IDX}, 0, s{S_IDX}"]
    return [pre + [f"s_add_u32 m0, s{S_M0}, {slot}",
                   f"s_add_u32 s30, s{S_WOF}, 4096",
                   f"buffer_load_dwordx4 v{V_L16}, {sr(S_WS)}, s{S_CO} offen lds"],
            [f"buffer_load_dwordx4 v{V_L16}, {sr(S_WS)}, s{S_CO} offen offset:1024 lds"],
            [f"s_add_u32 m0, s{S_M0}, {slot + 16384}",
             "s_nop 0",
             f"buffer_load_dwordx4 v{V_WD}, {sr(wsrd)}, s{S_WOF} offen lds"],
            [f"s_add_u32 m0, s{S_M0}, {slot + 16384 + 1024}",
             "s_nop 0",
             f"buffer_load_dwordx4 v{V_WD}, {sr(wsrd)}, s30 offen lds"]]


def issue(a, st, fin):
    for p in pieces(st, fin):
        for x in p:
            a(x)


G3 = [int(x) for x in os.environ.get("K3G", "1,3,5,7").split(",")]


def loop(a, fin):
    NST = NA + 8 if fin else NP
    for st in range(NST):
        n_after = min(st + 2, NST - 1) - st
        a(f"s_waitcnt vmcnt({4 * n_after if st >= 2 else 4 + 2 * st})")
        a("s_barrier")
        if K3S and st == 0:
            a("s_memtime s[72:73]")
        hi = (st & 3) >> 1
        so = (st & 1) * 32768
        for kk in range(0 if os.environ.get("K3NOR") else 2):
            f = FRG + 16 * kk
            for t in range(2):
                a(f"ds_read_b128 {vr(f + 4 * t)}, v{V_CA + 2 * t + hi} offset:{so + kk * 1024}")
            for j in range(2):
                for g in range(2):
                    a(f"ds_read_b64_tr_b16 {vr(f + 8 + 4 * j + 2 * g, 2)}, v{V_WA + 2 * j + hi} offset:{so + kk * 4096 + g * 2048}")
        pc = pieces(st + 3, fin) if st + 3 < NST else None
        isb = fin and st >= NA
        acc = ACB if isb else ACA
        for kk in range(2):
            f = FRG + 16 * kk
            a(f"s_waitcnt lgkmcnt({6 - 6 * kk})")
            c = "0" if (kk == 0 and (st == 0 or (fin and st == NA))) else None
            for t in range(2):
                for j in range(2):
                    if not os.environ.get("K3NOM"):
                        mfma(a, acc + 16 * (t * 2 + j), f + 8 + 4 * j, f + 4 * t, c)
                    gap = kk * 4 + t * 2 + j
                    if pc and gap in G3:
                        for x in pc[G3.index(gap)]:
                            a(x)


def exchange(a, fin):
    T = V_T
    a("s_barrier")
    a(f"s_lshl_b32 s30, s{S_WAVE}, 13")
    a(f"v_add_u32 v{T}, s30, v{V_L16}")
    a(f"s_xor_b32 s30, s{S_WAVE}, 4")
    a("s_lshl_b32 s30, s30, 13")
    a(f"v_add_u32 v{T + 1}, s30, v{V_L16}")
    a(f"v_add_u32 v{T + 2}, 0x10000, v{T}")
    a(f"v_add_u32 v{T + 3}, 0x10000, v{T + 1}")
    a("s_nop 7")
    for r, acc in enumerate((ACA, ACB) if fin else (ACA,)):
        for q in range(8):
            a(f"ds_write_b128 v{T + 2 * r}, {vr(acc + 32 + 4 * q)} offset:{q * 1024}")
    a("s_waitcnt lgkmcnt(0)")
    a("s_barrier")
    for r, acc in enumerate((ACA, ACB) if fin else (ACA,)):
        for q in range(8):
            a(f"ds_read_b128 {vr(acc + 32 + 4 * q)}, v{T + 1 + 2 * r} offset:{q * 1024}")
    a("s_waitcnt lgkmcnt(0)")
    for r, acc in enumerate((ACA, ACB) if fin else (ACA,)):
        for e in range(32):
            a(f"v_add_f32 v{acc + e}, v{acc + e}, v{acc + 32 + e}")


def stamp(a):
    if not K3S:
        return
    a("s_waitcnt vmcnt(0)")
    a("s_memtime s[76:77]")
    a("s_waitcnt lgkmcnt(0)")
    a("s_sub_u32 s72, s72, s70")
    a("s_sub_u32 s74, s74, s70")
    a("s_sub_u32 s76, s76, s70")
    a("v_mov_b32 v12, s78")
    a("v_mov_b32 v13, s72")
    a("v_mov_b32 v14, s74")
    a("v_mov_b32 v15, s76")
    a("s_lshl_b32 s33, s2, 3")
    a(f"s_add_u32 s33, s33, s{S_WAVE}")
    a("s_lshl_b32 s33, s33, 4")
    a("s_add_u32 s33, s33, 0xC800000")
    a("v_mov_b32 v16, 0")
    a(f"buffer_store_dwordx4 v[12:15], v16, {sr(S_WS)}, s33 offen")


def epi(a, fin):
    T = V_T
    lane = V_LANE
    tg = "F" if fin else "P"
    a("s_lshl_b32 s30, s35, 1")
    a("s_add_u32 s38, s30, s34")
    a("s_lshl_b32 s37, s38, 5")
    a(f"s_lshl_b32 s31, s{S_MT}, 7")
    a("s_add_u32 s30, s37, s31")
    a("s_lshl_b32 s30, s30, 2")
    a(f"s_add_u32 s30, s30, {WS_G}")
    a(f"v_and_b32 v{T + 8}, 31, v{lane}")
    a(f"v_lshlrev_b32 v{V_G}, 2, v{T + 8}")
    a(f"buffer_load_dword v{V_G}, v{V_G}, {sr(S_WS)}, s30 offen")
    exchange(a, fin)
    a(f"s_lshl_b32 s39, s{S_TILE}, 2")
    a("s_add_u32 s39, s39, s38")
    a("s_lshl_b32 s39, s39, 1")
    a("s_add_u32 s39, s39, s36")
    a("s_lshl_b32 s39, s39, 16")
    a(f"s_add_u32 s39, s39, {WS_P}")
    a("s_lshl_b32 s40, s38, 1")
    a("s_add_u32 s40, s40, s36")
    a("s_lshl_b32 s40, s40, 2")
    a(f"s_lshl_b32 s30, s{S_TILE}, 8")
    a("s_add_u32 s40, s40, s30")
    a(f"s_add_u32 s40, s40, {WS_F}")
    a(f"v_mov_b32 v{T}, 0")
    a(f"s_cmp_eq_u32 s38, s{S_KS}")
    a(f"s_cbranch_scc1 K3_FZ{tg}")

    def bmix():
        a("s_waitcnt vmcnt(8)" if first[0] else "s_waitcnt vmcnt(24)")
        a(f"v_sub_f32 v{T + 6}, 1.0, v{V_G}")
        bf16_round(a, T + 6, T + 6)
        for e in range(32):
            bf16_round(a, ACB + e, ACB + e)
            a(f"v_mul_f32 v{ACB + e}, v{ACB + e}, v{T + 6}")
            bf16_round(a, ACB + e, ACB + e)
    first = [True]
    a(f"s_lshl_b32 s30, s{S_KS}, 13")
    a("s_add_u32 s30, s30, s39")
    a("s_add_u32 s31, s30, 4096")
    for q in range(8):
        a(f"buffer_store_dwordx4 {vr(ACA + 4 * q)}, v{V_L16}, {sr(S_WS)}, s{30 + q // 4} offen offset:{(q % 4) * 1024} sc1")
    if fin:
        bmix()
        a("s_add_u32 s30, s39, 32768")
        for q in range(4):
            pack8(a, ACB + 32 + 4 * q, ACB + 8 * q)
            a(f"buffer_store_dwordx4 {vr(ACB + 32 + 4 * q)}, v{V_L16}, {sr(S_WS)}, s30 offen offset:{q * 1024} sc1")
    a(f"v_mov_b32 v{T + 1}, 1")
    a("s_waitcnt vmcnt(0)")
    a("s_mov_b64 exec, 1")
    a(f"buffer_atomic_add v{T + 1}, v{T}, {sr(S_WS)}, s40 offen sc1")
    a("s_mov_b64 exec, -1")
    stamp(a)
    a("s_endpgm")
    a.label(f"K3_FZ{tg}")
    a("s_mov_b32 s31, 0")
    a.label(f"K3_SPIN{tg}")
    a(f"v_mov_b32 v{T + 1}, 0")
    a("s_mov_b64 exec, 1")
    a(f"buffer_atomic_or v{T + 1}, v{T}, {sr(S_WS)}, s40 offen sc0 sc1")
    a("s_mov_b64 exec, -1")
    a("s_waitcnt vmcnt(0)")
    a(f"v_readfirstlane_b32 s32, v{T + 1}")
    a("s_cmp_ge_u32 s32, 3")
    a(f"s_cbranch_scc1 K3_GO{tg}")
    a(f"s_sleep {os.environ.get('K3SL', '4')}")
    a("s_add_u32 s31, s31, 1")
    a("s_cmp_lt_u32 s31, 0x40000")
    a(f"s_cbranch_scc1 K3_SPIN{tg}")
    a.label(f"K3_GO{tg}")
    dst = [PL, PL + 32, ACA + 32]
    for p in range(3):
        a(f"s_add_u32 s30, s{S_KS}, {p + 1}")
        a("s_and_b32 s30, s30, 3")
        a("s_lshl_b32 s30, s30, 13")
        a("s_add_u32 s30, s30, s39")
        a("s_add_u32 s31, s30, 4096")
        for hq in range(2):
            for q in range(4):
                a(f"buffer_load_dwordx4 {vr(dst[p] + 16 * hq + 4 * q)}, v{V_L16}, {sr(S_WS)}, s{30 + hq} offen offset:{q * 1024} sc1")
    if fin:
        first[0] = False
        bmix()
    else:
        a("s_add_u32 s30, s39, 32768")
        for q in range(4):
            a(f"buffer_load_dwordx4 {vr(ACB + 32 + 4 * q)}, v{V_L16}, {sr(S_WS)}, s30 offen offset:{q * 1024} sc1")
    a(f"s_xor_b32 s30, s{S_WAVE}, 4")
    a("s_lshl_b32 s30, s30, 13")
    a(f"v_mul_u32_u24 v{T + 8}, 144, v{T + 8}")
    a(f"v_lshrrev_b32 v{T + 9}, 5, v{lane}")
    a(f"v_lshl_add_u32 v{T + 8}, v{T + 9}, 3, v{T + 8}")
    a(f"v_add_u32 v{T + 8}, s30, v{T + 8}")
    a(f"v_lshrrev_b32 v{T}, 3, v{lane}")
    a(f"v_and_b32 v{T + 1}, 7, v{lane}")
    a(f"v_mul_u32_u24 v{T + 2}, 144, v{T}")
    a(f"v_lshl_add_u32 v{T + 2}, v{T + 1}, 4, v{T + 2}")
    a(f"v_add_u32 v{T + 2}, s30, v{T + 2}")
    a(f"v_lshlrev_b32 v{T + 3}, 10, v{T}")
    a(f"v_lshl_add_u32 v{T + 3}, v{T + 1}, 4, v{T + 3}")
    a(f"s_lshl_b32 s30, s{S_MT}, 17")
    a(f"s_lshl_b32 s31, s{S_NT}, 8")
    a("s_add_u32 s30, s30, s31")
    a("s_lshl_b32 s31, s37, 10")
    a("s_add_u32 s30, s30, s31")
    a("s_lshl_b32 s31, s36, 7")
    a("s_add_u32 s30, s30, s31")
    a("s_waitcnt vmcnt(0)")
    if not fin:
        for e in range(16):
            a(f"v_lshlrev_b32 v{ACB + 2 * e}, 16, v{ACB + 32 + e}")
            a(f"v_and_b32 v{ACB + 2 * e + 1}, 0xffff0000, v{ACB + 32 + e}")
    for e in range(32):
        a(f"v_add_f32 v{PL + e}, v{PL + e}, v{PL + 32 + e}")
        a(f"v_add_f32 v{ACA + e}, v{ACA + e}, v{ACA + 32 + e}")
        a(f"v_add_f32 v{ACA + e}, v{ACA + e}, v{PL + e}")
        bf16_round(a, ACA + e, ACA + e)
        a(f"v_mul_f32 v{ACA + e}, v{ACA + e}, v{V_G}")
        bf16_round(a, ACA + e, ACA + e)
        a(f"v_add_f32 v{ACA + e}, v{ACA + e}, v{ACB + e}")
    for j in range(2):
        for g in range(4):
            r = ACA + 16 * j + 4 * g
            d = PL + 2 * (4 * j + g)
            a(f"v_cvt_pk_bf16_f32 v{d}, v{r}, v{r + 1}")
            a(f"v_cvt_pk_bf16_f32 v{d + 1}, v{r + 2}, v{r + 3}")
            a(f"ds_write_b64 v{T + 8}, {vr(d, 2)} offset:{j * 64 + g * 16}")
    a("s_waitcnt lgkmcnt(0)")
    for it in range(4):
        a(f"ds_read_b128 {vr(FRG + 4 * it)}, v{T + 2} offset:{it * 8 * 144}")
    for it in range(4):
        a(f"s_waitcnt lgkmcnt({3 - it})")
        a(f"s_add_u32 s31, s30, {it * 8192}")
        a(f"buffer_store_dwordx4 {vr(FRG + 4 * it)}, v{T + 3}, {sr(S_OUT)}, s31 offen")
    stamp(a)
    a("s_endpgm")


def gen_k3(a):
    L = "attn_kernel"
    a.label("K3_ENTRY")
    if K3S:
        a("s_memtime s[70:71]")
        a("s_memrealtime s[78:79]")
    a("v_lshrrev_b32 v1, 6, v0")
    a(f"v_and_b32 v{V_LANE}, 63, v0")
    a(f"v_readfirstlane_b32 s{S_WAVE}, v1")
    a(f"v_lshlrev_b32 v{V_L16}, 4, v{V_LANE}")
    a(f"s_bfe_u32 s{S_KS}, s2, 0x20001")
    a("s_and_b32 s30, s2, 1")
    a("s_lshr_b32 s31, s2, 5")
    a("s_lshl_b32 s31, s31, 1")
    a("s_add_u32 s30, s30, s31")
    a(f"s_sub_u32 s{S_MT}, 15, s30")
    a(f"s_bfe_u32 s{S_NT}, s2, 0x20003")
    a(f"s_lshl_b32 s{S_TILE}, s{S_NT}, 4")
    a(f"s_add_u32 s{S_TILE}, s{S_TILE}, s{S_MT}")
    a(f"s_lshl_b32 s{S_M0}, s{S_WAVE}, 11")
    T = V_T
    lane = V_LANE
    a(f"s_lshl_b32 s30, s{S_MT}, 2")
    a(f"s_lshr_b32 s31, s{S_WAVE}, 1")
    a("s_add_u32 s30, s30, s31")
    a(f"s_and_b32 s31, s{S_WAVE}, 1")
    a("s_lshl_b32 s31, s31, 11")
    a("s_lshl_b32 s32, s30, 18")
    a("s_add_u32 s32, s32, s31")
    a(f"s_mul_i32 s33, s{S_KS}, {NP * 4 * 1024}")
    a("s_add_u32 s32, s32, s33")
    a(f"s_add_u32 s{S_CO}, s32, {WS_O}")
    a("s_lshl_b32 s32, s30, 15")
    a("s_add_u32 s32, s32, s31")
    a(f"s_add_u32 s{S_CB}, s32, {WS_OB}")
    a(f"s_lshl_b32 s{S_WBF}, s{S_WAVE}, 13")
    a(f"s_mul_i32 s33, s{S_KS}, {NP * 64 * 1024}")
    a(f"s_add_u32 s{S_WOF}, s33, s{S_WBF}")
    a(f"v_lshrrev_b32 v{T}, 4, v{lane}")
    a(f"v_bfe_u32 v{T + 1}, v{lane}, 2, 2")
    a(f"v_xor_b32 v{T + 2}, v{T}, v{T + 1}")
    a(f"v_lshlrev_b32 v{T + 2}, 6, v{T + 2}")
    a(f"v_lshl_add_u32 v{T + 2}, v{T}, 10, v{T + 2}")
    a(f"v_and_b32 v{T + 3}, 3, v{lane}")
    a(f"v_lshl_add_u32 v{T + 2}, v{T + 3}, 4, v{T + 2}")
    a(f"s_lshl_b32 s30, s{S_NT}, 8")
    a(f"v_add_u32 v{V_WD}, s30, v{T + 2}")
    srd(a, S_OUT, 88, 2048 * 512 * 2)
    a(f"s_mov_b32 s{S_CBASE}, s{S_CO}")
    a(f"s_mov_b32 s{S_WBASE}, s{S_WOF}")
    a(f"s_cmp_eq_u32 s{S_KS}, 3")
    a(f"s_cselect_b32 s{S_NWRAP}, {NA}, {NP}")
    if os.environ.get("K3ROT", "1") == "1":
        a(f"s_mov_b32 s{S_IDX}, s{S_MT}")
        for _ in range(3):
            a(f"s_cmp_ge_u32 s{S_IDX}, s{S_NWRAP}")
            a(f"s_cselect_b32 s30, s{S_NWRAP}, 0")
            a(f"s_sub_u32 s{S_IDX}, s{S_IDX}, s30")
    else:
        a(f"s_mov_b32 s{S_IDX}, 0")
    a(f"s_lshl_b32 s55, s{S_MT}, 8")
    a(f"s_add_u32 s55, s55, {WS_F + 128}")
    a(f"v_mov_b32 v{T + 8}, 0")
    a(f"v_mov_b32 v{T + 9}, 0")
    a("s_waitcnt vmcnt(0)")
    a(f"s_cmp_lg_u32 s{S_WAVE}, 0")
    a("s_cbranch_scc1 K3_NP0")
    a("s_mov_b64 exec, 1")
    a(f"buffer_atomic_or v{T + 9}, v{T + 8}, {sr(S_WS)}, s55 offen sc0 sc1")
    a("s_mov_b64 exec, -1")
    a.label("K3_NP0")
    a("s_barrier")
    for st in range(3):
        pc = pieces(st, False)
        for x in pc[0][:-3] + [pc[0][-2]] + pc[2] + pc[3]:
            a(x)
        a(f"s_mov_b32 s{52 + st}, s{S_CO}")
    a(f"s_cmp_lg_u32 s{S_WAVE}, 0")
    a("s_cbranch_scc1 K3_GO0")
    a("s_mov_b32 s30, s55")
    a("s_mov_b32 s31, 0")
    a("s_mov_b32 s33, 128")
    a("s_waitcnt vmcnt(6)")
    a("s_branch K3_CHK0")
    a.label("K3_SPIN0")
    a(f"v_mov_b32 v{T + 9}, 0")
    a("s_mov_b64 exec, 1")
    a(f"buffer_atomic_or v{T + 9}, v{T + 8}, {sr(S_WS)}, s30 offen sc0 sc1")
    a("s_mov_b64 exec, -1")
    a("s_waitcnt vmcnt(0)")
    a.label("K3_CHK0")
    a(f"v_readfirstlane_b32 s32, v{T + 9}")
    a("s_cmp_ge_u32 s32, s33")
    a("s_cbranch_scc1 K3_NX0")
    a(f"s_sleep {os.environ.get('K3SL', '4')}")
    a("s_add_u32 s31, s31, 1")
    a("s_cmp_lt_u32 s31, 0x40000")
    a("s_cbranch_scc1 K3_SPIN0")
    a.label("K3_NX0")
    a(f"s_cmp_lg_u32 s{S_KS}, 3")
    a("s_cbranch_scc1 K3_GO0")
    a("s_cmp_eq_u32 s33, 256")
    a("s_cbranch_scc1 K3_GO0")
    a("s_mov_b32 s33, 256")
    a(f"s_mov_b32 s30, {WS_F + 128 + 16 * 256}")
    a("s_branch K3_SPIN0")
    a.label("K3_GO0")
    a("s_barrier")
    for st in range(3):
        a(f"s_add_u32 m0, s{S_M0}, {st * 32768}")
        a("s_nop 0")
        a(f"buffer_load_dwordx4 v{V_L16}, {sr(S_WS)}, s{52 + st} offen lds")
        a(f"buffer_load_dwordx4 v{V_L16}, {sr(S_WS)}, s{52 + st} offen offset:1024 lds")
    a(f"s_lshr_b32 s34, s{S_WAVE}, 2")
    a(f"s_bfe_u32 s35, s{S_WAVE}, 0x10001")
    a(f"s_and_b32 s36, s{S_WAVE}, 1")
    for t in range(2):
        a(f"s_xor_b32 s30, s34, {t}")
        a("s_lshl_b32 s31, s35, 1")
        a("s_add_u32 s30, s30, s31")
        a("s_lshl_b32 s30, s30, 2")
        a("s_lshl_b32 s31, s34, 1")
        a("s_add_u32 s30, s30, s31")
        a("s_lshl_b32 s30, s30, 10")
        a(f"v_add_u32 v{V_CA + 2 * t}, s30, v{V_L16}")
        a(f"v_add_u32 v{V_CA + 2 * t + 1}, 0x10000, v{V_CA + 2 * t}")
    a(f"v_lshrrev_b32 v{T}, 5, v{lane}")
    a(f"v_lshl_add_u32 v{T}, v{T}, 2, v{T + 1}")
    a(f"v_lshlrev_b32 v{T}, 8, v{T}")
    a(f"v_bfe_u32 v{T + 2}, v{lane}, 4, 1")
    a(f"v_lshl_add_u32 v{T}, v{T + 2}, 5, v{T}")
    a(f"v_lshl_add_u32 v{T}, v{T + 3}, 3, v{T}")
    a("s_lshl_b32 s30, s34, 13")
    a("s_add_u32 s30, s30, 16384")
    a(f"v_add_u32 v{T}, s30, v{T}")
    for j in range(2):
        a("s_lshl_b32 s30, s36, 1")
        a(f"s_add_u32 s30, s30, {j}")
        a(f"v_xor_b32 v{T + 2}, s30, v{T + 1}")
        a(f"v_lshl_add_u32 v{V_WA + 2 * j}, v{T + 2}, 6, v{T}")
        a(f"v_add_u32 v{V_WA + 2 * j + 1}, 0x10000, v{V_WA + 2 * j}")
    a(f"s_cmp_eq_u32 s{S_KS}, 3")
    a("s_cbranch_scc1 K3_FIN")
    for fin in (False, True):
        if fin:
            a.label("K3_FIN")
        loop(a, fin)
        if K3S:
            a("s_memtime s[74:75]")
        epi(a, fin)
    kernel_desc(a, L)
```

```python
import sys, importlib
sys.path.insert(0, 'gen')
from common import *
import k1, k2, k3, k2b, k2c, k3b
def build(path):
    a = Asm()
    hdr = open(f'cdna_kernels/{NAME}.s.ref').read().split('\n')
    for l in hdr:
        if l.startswith('; @launch'): break
        a.raw(l)
    a.raw("; @launch kernel=proj_kernel grid=(256,1,1) block=(512,1,1) lds=131072")
    a.raw("; @launch kernel=attn_kernel grid=(256,1,1) block=(512,1,1) lds=131072")
    import os
    for l in os.environ.get('XLAUNCH','').split(','):
        if l=='3': a.raw("; @launch kernel=out_kernel grid=(256,1,1) block=(512,1,1) lds=131072")
        if l=='1': a.raw("; @launch kernel=proj_kernel grid=(256,1,1) block=(512,1,1) lds=131072")
        if l=='2': a.raw("; @launch kernel=attn_kernel grid=(256,1,1) block=(512,1,1) lds=114688")
    a.raw('.amdgcn_target "amdgcn-amd-amdhsa--gfx950"')
    k1.gen_k1(a)
    k2c.gen_k2(a)
    k3b.gen_k3(a)
    open(path, 'w').write(a.text())
if __name__ == '__main__':
    build(sys.argv[1] if len(sys.argv) > 1 else f'cdna_kernels/{NAME}.s')
```

```python
from common import *

LOG2E = 0x3FB8AA3B

V_XD = 4
V_WD = 8
V_XA = 12
V_WA = 16
V_L16 = 18
V_LANE = 19
V_T = 20
FA = 64
FB = 88
ACC = 128

S_X = 8
S_W = 12
S_WS = 16
S_WAVE = 20
S_MODE = 21
S_MT = 22
S_NL = 23
S_SEC = 24
S_WSTEP = 25
S_ORI = 26
S_M0X = 27
S_M0W = 28
S_T = 30
S_PHI = 52


def read_frags(a, fs, buf, s):
    for tgl in range(4):
        a(f"ds_read_b128 {vr(fs + 4 * tgl)}, v{V_XA + s} offset:{buf * 32768 + tgl * 4096}")
    for jj in range(2):
        for inst in range(2):
            a(f"ds_read_b64_tr_b16 {vr(fs + 16 + 4 * jj + 2 * inst, 2)}, v{V_WA + jj} offset:{buf * 32768 + s * 8192 + inst * 2048}")


S_ROT = 29


def stage_offs(a, stage):
    a(f"s_add_u32 s31, s{S_ROT}, {stage}")
    a("s_and_b32 s31, s31, 7")
    a("s_lshl_b32 s30, s31, 7")
    a(f"s_mul_i32 s31, s{S_WSTEP}, s31")


def issue_dma(a, buf, stage):
    stage_offs(a, stage)
    for i in range(4):
        a(f"s_add_u32 m0, s{S_M0X}, {buf * 32768 + i * 1024}")
        a("s_nop 0")
        a(f"buffer_load_dwordx4 v{V_XD + i}, {sr(S_X)}, s30 offen lds")
    for i in range(4):
        a(f"s_add_u32 m0, s{S_M0W}, {buf * 32768 + i * 1024}")
        a("s_nop 0")
        a(f"buffer_load_dwordx4 v{V_WD + i}, {sr(S_W)}, s31 offen lds")


import os
K1S = os.environ.get("K1S", "")


def stamp_end(a):
    if not K1S:
        return
    a("s_waitcnt vmcnt(0)")
    a("s_memtime s[76:77]")
    a("s_waitcnt lgkmcnt(0)")
    a("s_sub_u32 s72, s72, s70")
    a("s_sub_u32 s74, s74, s70")
    a("s_sub_u32 s76, s76, s70")
    a("v_mov_b32 v12, s78")
    a("v_mov_b32 v13, s72")
    a("v_mov_b32 v14, s74")
    a("v_mov_b32 v15, s76")
    a("s_lshl_b32 s33, s2, 3")
    a(f"s_add_u32 s33, s33, s{S_WAVE}")
    a("s_lshl_b32 s33, s33, 4")
    a("s_add_u32 s33, s33, 0xC800000")
    a("v_mov_b32 v16, 0")
    a(f"buffer_store_dwordx4 v[12:15], v16, {sr(S_WS)}, s33 offen")


K1G = [int(x) for x in os.environ.get("K1G", "0,2,4,6,8,10,12,14").split(",")]


def dma_one(a, buf, i):
    if i < 4:
        a(f"s_add_u32 m0, s{S_M0X}, {buf * 32768 + i * 1024}")
        a("s_nop 0")
        a(f"buffer_load_dwordx4 v{V_XD + i}, {sr(S_X)}, s30 offen lds")
    else:
        i -= 4
        a(f"s_add_u32 m0, s{S_M0W}, {buf * 32768 + i * 1024}")
        a("s_nop 0")
        a(f"buffer_load_dwordx4 v{V_WD + i}, {sr(S_W)}, s31 offen lds")


S_XOFF = 56
S_XNXT = 57


def part_off(a, part, t):
    r = 30 + part
    a(f"s_add_u32 s{r}, s{S_ROT}, {t & 7}")
    a(f"s_and_b32 s{r}, s{r}, 7")
    if part == 0:
        a(f"s_lshl_b32 s{r}, s{r}, 7")
        a(f"s_add_u32 s{r}, s{r}, s{S_XNXT if t >= 8 else S_XOFF}")
    else:
        a(f"s_mul_i32 s{r}, s{S_WSTEP}, s{r}")


GA = [int(x) for x in os.environ.get("K1GA", "1,3,5,7").split(",")]
GB = [int(x) for x in os.environ.get("K1GB", "1,3,5,7").split(",")]


def main_loop(a, normal):
    tag = "N" if normal else "T"
    a.label(f"K1_LOOP{tag}")
    for stage in range(8):
        buf = stage & 1
        for s in range(4):
            cur = FA if s % 2 == 0 else FB
            nxt = FB if s % 2 == 0 else FA
            if s < 3:
                read_frags(a, nxt, buf, s + 1)
                a("s_waitcnt lgkmcnt(8)")
            else:
                a("s_waitcnt vmcnt(0) lgkmcnt(0)")
                a("s_barrier")
                read_frags(a, nxt, buf ^ 1, 0)
            if s == 0:
                part_off(a, 1, stage + 1)
            if s == 3:
                part_off(a, 0, stage + 2)
            for tgl in range(4):
                for jj in range(2):
                    d = ACC + 16 * (tgl * 2 + jj)
                    xf = cur + 4 * tgl
                    wf = cur + 16 + 4 * jj
                    c = "0" if (stage == 0 and s == 0) else None
                    if normal:
                        mfma(a, d, xf, wf, c)
                    else:
                        mfma(a, d, wf, xf, c)
                    gap = tgl * 2 + jj
                    tgt = None
                    if s == 0 and gap in GB:
                        tgt, i = stage + 1, 4 + GB.index(gap)
                    if s == 3 and gap in GA:
                        tgt, i = stage + 2, GA.index(gap)
                    if tgt is not None:
                        if tgt >= 8:
                            a(f"s_cbranch_vccz K1_SK{tag}{stage}_{i}")
                        dma_one(a, tgt & 1, i)
                        if tgt >= 8:
                            a.label(f"K1_SK{tag}{stage}_{i}")


def softmax8(a, src, dstp, t):
    a(f"v_max3_f32 v{t}, v{src}, v{src + 1}, v{src + 2}")
    a(f"v_max3_f32 v{t}, v{t}, v{src + 3}, v{src + 4}")
    a(f"v_max3_f32 v{t}, v{t}, v{src + 5}, v{src + 6}")
    a(f"v_max_f32 v{t}, v{t}, v{src + 7}")
    a(f"v_mov_b32 v{t + 1}, v{t}")
    a("s_nop 1")
    a(f"v_permlane32_swap_b32 v{t}, v{t + 1}")
    a("s_nop 1")
    a(f"v_max_f32 v{t}, v{t}, v{t + 1}")
    for i in range(8):
        a(f"v_sub_f32 v{src + i}, v{src + i}, v{t}")
    for i in range(8):
        a(f"v_mul_f32 v{src + i}, s33, v{src + i}")
    for i in range(8):
        a(f"v_exp_f32 v{src + i}, v{src + i}")
    a("s_nop 0")
    a(f"v_add_f32 v{t}, v{src}, v{src + 1}")
    for i in range(2, 8):
        a(f"v_add_f32 v{t}, v{t}, v{src + i}")
    a(f"v_mov_b32 v{t + 1}, v{t}")
    a("s_nop 1")
    a(f"v_permlane32_swap_b32 v{t}, v{t + 1}")
    a("s_nop 1")
    a(f"v_add_f32 v{t}, v{t}, v{t + 1}")
    a(f"v_rcp_f32 v{t}, v{t}")
    a("s_nop 0")
    for i in range(8):
        a(f"v_mul_f32 v{src + i}, v{src + i}, v{t}")
    pack8(a, dstp, src)


def gen_k1(a):
    L = "proj_kernel"
    kernel_begin(a, L)
    a("s_cmp_ge_u32 s2, 256")
    a("s_cbranch_scc1 K1_EXIT")
    if K1S:
        a("s_memtime s[70:71]")
        a("s_memrealtime s[78:79]")
    a("s_load_dwordx4 s[36:39], s[0:1], 0")
    a("s_load_dwordx4 s[40:43], s[0:1], 16")
    a("s_load_dwordx2 s[44:45], s[0:1], 32")
    a("s_load_dwordx4 s[48:51], s[0:1], 56")
    a("s_load_dwordx2 s[46:47], s[0:1], 104")
    a("s_load_dwordx2 s[58:59], s[0:1], 80")
    a("v_lshrrev_b32 v1, 6, v0")
    a(f"v_and_b32 v{V_LANE}, 63, v0")
    a(f"v_readfirstlane_b32 s{S_WAVE}, v1")
    a(f"v_lshlrev_b32 v{V_L16}, 4, v{V_LANE}")
    a("s_waitcnt lgkmcnt(0)")
    srd(a, S_WS, 46, WS_SIZE)
    srd(a, S_PHI, 50, 32 * 16 * 16 * 2)
    srd(a, 64, 58, 512 * 2)
    if os.environ.get("K1ROT", "1") == "1":
        a(f"s_bfe_u32 s{S_ROT}, s2, 0x30003")
    else:
        a(f"s_mov_b32 s{S_ROT}, 0")
    a("s_cmp_lt_u32 s2, 64")
    a("s_cbranch_scc1 K1_BMODE")
    a(f"s_mov_b32 s{S_MODE}, 0")
    a("s_sub_u32 s30, s2, 64")
    a("s_and_b32 s31, s30, 7")
    a("s_lshr_b32 s32, s30, 3")
    a(f"s_and_b32 s{S_MT}, s32, 3")
    a("s_lshr_b32 s32, s32, 2")
    if os.environ.get("K1MAP", "0") == "1":
        a("s_lshl_b32 s31, s31, 1")
        a("s_and_b32 s33, s32, 1")
        a("s_add_u32 s31, s31, s33")
        a("s_lshr_b32 s32, s32, 1")
        a("s_lshl_b32 s32, s32, 4")
    else:
        a("s_mul_i32 s31, s31, 6")
    a("s_add_u32 s32, s32, s31")
    a(f"s_lshr_b32 s{S_SEC}, s32, 4")
    a(f"s_and_b32 s{S_NL}, s32, 15")
    a(f"s_cmp_eq_u32 s{S_SEC}, 0")
    a("s_cselect_b32 s30, s36, s38")
    a("s_cselect_b32 s31, s37, s39")
    if os.environ.get("K1X") == "1":
        a("s_mov_b32 s30, s36")
        a("s_mov_b32 s31, s37")
    if os.environ.get("K1X") == "2":
        a("s_mov_b32 s30, s38")
        a("s_mov_b32 s31, s39")
    srd(a, S_X, 30, 2048 * 512 * 2)
    a(f"s_cmp_eq_u32 s{S_SEC}, 0")
    a("s_cselect_b32 s30, s40, s42")
    a("s_cselect_b32 s31, s41, s43")
    a(f"s_cmp_eq_u32 s{S_SEC}, 2")
    a("s_cselect_b32 s30, s44, s30")
    a("s_cselect_b32 s31, s45, s31")
    a(f"s_cselect_b32 s{S_ORI}, 1, 0")
    srd(a, S_W, 30, 512 * 4096 * 2)
    a(f"s_mov_b32 s{S_WSTEP}, {64 * 8192}")
    a("s_mov_b32 s34, 8192")
    a(f"s_lshl_b32 s35, s{S_NL}, 9")
    a("s_branch K1_COMMON")
    a.label("K1_BMODE")
    a(f"s_mov_b32 s{S_MODE}, 1")
    a(f"s_and_b32 s{S_MT}, s2, 7")
    a(f"s_lshr_b32 s{S_NL}, s2, 3")
    a(f"s_mov_b32 s{S_SEC}, 3")
    srd(a, S_X, 36, 2048 * 512 * 2)
    srd(a, S_W, 48, 512 * 1536 * 2)
    a(f"s_mov_b32 s{S_WSTEP}, {64 * 3072}")
    a("s_mov_b32 s34, 3072")
    a(f"s_lshl_b32 s35, s{S_NL}, 7")
    a(f"s_lshr_b32 s30, s{S_WAVE}, 1")
    a("s_cmp_eq_u32 s30, 1")
    a(f"s_cselect_b32 s{S_ORI}, 1, 0")
    a.label("K1_COMMON")
    T = V_T
    lane = V_LANE
    a(f"v_lshrrev_b32 v{T}, 3, v{lane}")
    a(f"v_lshrrev_b32 v{T + 1}, 4, v{lane}")
    a(f"v_and_b32 v{T + 2}, 7, v{lane}")
    a(f"s_lshl_b32 s30, s{S_MT}, 8")
    a(f"s_lshl_b32 s31, s{S_WAVE}, 5")
    a("s_add_u32 s30, s30, s31")
    for i in range(4):
        a(f"v_add_u32 v{T + 3}, {4 * i}, v{T + 1}")
        a(f"v_and_b32 v{T + 3}, 7, v{T + 3}")
        a(f"v_xor_b32 v{T + 3}, v{T + 3}, v{T + 2}")
        a(f"v_add_u32 v{T + 4}, s30, v{T}")
        a(f"v_add_u32 v{T + 4}, {8 * i}, v{T + 4}")
        a(f"v_lshlrev_b32 v{T + 4}, 10, v{T + 4}")
        a(f"v_lshl_add_u32 v{V_XD + i}, v{T + 3}, 4, v{T + 4}")
    a(f"v_lshrrev_b32 v{T}, 5, v{lane}")
    a(f"v_bfe_u32 v{T + 1}, v{lane}, 2, 3")
    a(f"v_and_b32 v{T + 2}, 3, v{lane}")
    a(f"s_lshl_b32 s31, s{S_WAVE}, 3")
    for i in range(4):
        a(f"v_add_u32 v{T + 3}, {2 * i}, v{T}")
        a(f"v_and_b32 v{T + 4}, 3, v{T + 3}")
        a(f"v_xor_b32 v{T + 4}, v{T + 4}, v{T + 1}")
        a(f"v_add_u32 v{T + 3}, s31, v{T + 3}")
        a(f"v_mul_lo_u32 v{T + 3}, v{T + 3}, s34")
        a(f"s_cmp_eq_u32 s{S_MODE}, 1")
        a(f"s_cbranch_scc1 K1_WCOLB{i}")
        a(f"v_lshlrev_b32 v{T + 5}, 6, v{T + 4}")
        a(f"s_branch K1_WCOLD{i}")
        a.label(f"K1_WCOLB{i}")
        a(f"v_lshrrev_b32 v{T + 6}, 1, v{T + 4}")
        a(f"v_add_u32 v{T + 5}, 1, v{T + 6}")
        a(f"v_cmp_gt_u32 vcc, 2, v{T + 6}")
        a("s_nop 1")
        a(f"v_cndmask_b32 v{T + 5}, 0, v{T + 5}, vcc")
        a(f"v_lshlrev_b32 v{T + 5}, 10, v{T + 5}")
        a(f"v_and_b32 v{T + 6}, 1, v{T + 4}")
        a(f"v_lshl_add_u32 v{T + 5}, v{T + 6}, 6, v{T + 5}")
        a.label(f"K1_WCOLD{i}")
        a(f"v_lshl_add_u32 v{T + 5}, v{T + 2}, 4, v{T + 5}")
        a(f"v_add3_u32 v{V_WD + i}, v{T + 3}, v{T + 5}, s35")
    a(f"s_lshl_b32 s{S_M0X}, s{S_WAVE}, 12")
    a(f"s_add_u32 s{S_M0W}, s{S_M0X}, 65536")
    a(f"v_and_b32 v{T}, 31, v{lane}")
    a(f"v_lshrrev_b32 v{T + 1}, 5, v{lane}")
    a(f"v_bfe_u32 v{T + 2}, v{lane}, 1, 3")
    a(f"v_xor_b32 v{T + 1}, v{T + 1}, v{T + 2}")
    a(f"s_and_b32 s30, s{S_WAVE}, 1")
    a("s_lshl_b32 s30, s30, 14")
    a(f"v_lshlrev_b32 v{T}, 7, v{T}")
    a(f"v_add_u32 v{T}, s30, v{T}")
    for s in range(4):
        a(f"v_xor_b32 v{T + 3}, {2 * s}, v{T + 1}")
        a(f"v_lshl_add_u32 v{V_XA + s}, v{T + 3}, 4, v{T}")
    a(f"v_lshrrev_b32 v{T}, 5, v{lane}")
    a(f"v_bfe_u32 v{T + 1}, v{lane}, 2, 2")
    a(f"v_lshl_add_u32 v{T}, v{T}, 3, v{T + 1}")
    a(f"v_lshlrev_b32 v{T}, 9, v{T}")
    a(f"v_bfe_u32 v{T + 2}, v{lane}, 4, 1")
    a(f"v_lshl_add_u32 v{T}, v{T + 2}, 5, v{T}")
    a(f"v_and_b32 v{T + 2}, 3, v{lane}")
    a(f"v_lshl_add_u32 v{T}, v{T + 2}, 3, v{T}")
    a(f"v_add_u32 v{T}, 0x10000, v{T}")
    a(f"s_lshr_b32 s30, s{S_WAVE}, 1")
    a("s_lshl_b32 s30, s30, 1")
    for jj in range(2):
        a(f"s_add_u32 s31, s30, {jj}")
        a(f"v_xor_b32 v{T + 3}, s31, v{T + 1}")
        a(f"v_lshl_add_u32 v{V_WA + jj}, v{T + 3}, 6, v{T}")
    PH = 28
    a(f"s_cmp_eq_u32 s{S_MODE}, 0")
    a("s_cbranch_scc1 K1_NOPHI")
    a(f"v_lshrrev_b32 v{T}, 5, v{lane}")
    a(f"v_lshlrev_b32 v{T}, 7, v{T}")
    a(f"v_and_b32 v{T + 1}, 15, v{lane}")
    a(f"v_lshl_add_u32 v{T}, v{T + 1}, 1, v{T}")
    a(f"s_lshl_b32 s35, s{S_NL}, 11")
    for hl in range(4):
        for e in range(8):
            g, i = divmod(e, 4)
            a(f"buffer_load_ushort v{PH + 8 * hl + e}, v{T}, {sr(S_PHI)}, s35 offen offset:{hl * 512 + (8 * g + i) * 32}")
    a("s_branch K1_NOCT")
    a.label("K1_NOPHI")
    a("s_cmp_ge_u32 s2, 128")
    a("s_cbranch_scc1 K1_NOCT")
    srd(a, 84, 38, 2048 * 512 * 2)
    a(f"v_lshrrev_b32 v{T}, 4, v0")
    a(f"v_and_b32 v{T + 1}, 15, v0")
    a(f"v_lshlrev_b32 v{T}, 10, v{T}")
    a(f"v_lshl_add_u32 v{T}, v{T + 1}, 6, v{T}")
    a("s_sub_u32 s30, s2, 64")
    a("s_lshl_b32 s30, s30, 15")
    a(f"buffer_load_dword v26, v{T}, {sr(84)}, s30 offen")
    a.label("K1_NOCT")
    a(f"s_mov_b32 s{S_XOFF}, 0")
    a(f"s_mov_b32 s{S_XNXT}, {1 << 20}")
    issue_dma(a, 0, 0)
    part_off(a, 0, 1)
    for i in range(4):
        dma_one(a, 1, i)
    a(f"s_cmp_eq_u32 s{S_MODE}, 0")
    a("s_cselect_b64 vcc, -1, 0")
    a("s_waitcnt vmcnt(4)")
    a("s_barrier")
    if K1S:
        a("s_memtime s[72:73]")
    read_frags(a, FA, 0, 0)
    a.label("K1_AGAIN")
    a(f"s_cmp_eq_u32 s{S_ORI}, 1")
    a("s_cbranch_scc1 K1_LOOPN")
    main_loop(a, False)
    a("s_branch K1_EPI")
    main_loop(a, True)
    a.label("K1_EPI")
    if K1S:
        a("s_memtime s[74:75]")
    a("s_nop 15")
    a(f"s_cmp_eq_u32 s{S_MODE}, 1")
    a("s_cbranch_scc1 K1_EPIB")
    a(f"s_lshr_b32 s30, s{S_WAVE}, 1")
    a(f"s_and_b32 s31, s{S_WAVE}, 1")
    a(f"s_lshr_b32 s32, s30, 1")
    a(f"s_lshl_b32 s33, s{S_NL}, 1")
    a("s_add_u32 s32, s32, s33")
    a(f"s_mul_i32 s35, s32, {HPAD}")
    a(f"s_cmp_eq_u32 s{S_SEC}, 1")
    a(f"s_mov_b32 s33, {WS_V2 - (32 << 20)}")
    a(f"s_cselect_b32 s33, {WS_K2 - (16 << 20)}, s33")
    a("s_add_u32 s35, s35, s33")
    a(f"s_cmp_eq_u32 s{S_SEC}, 0")
    a("s_cselect_b32 s35, 0, s35")
    a("s_lshl_b32 s32, s32, 6")
    a(f"s_lshl_b32 s33, s{S_MT}, 3")
    a("s_add_u32 s32, s32, s33")
    a("s_lshl_b32 s33, s31, 2")
    a("s_add_u32 s32, s32, s33")
    a("s_lshl_b32 s32, s32, 13")
    a(f"s_lshl_b32 s33, s{S_SEC}, 24")
    a("s_add_u32 s32, s32, s33")
    a("s_add_u32 s32, s32, s35")
    a("s_and_b32 s30, s30, 1")
    a(f"s_cmp_eq_u32 s{S_ORI}, 1")
    a("s_cbranch_scc1 K1_EPIV")
    a(f"s_cmp_lg_u32 s{S_SEC}, 0")
    a("s_cbranch_scc1 K1_NOSCALE")
    a("s_mov_b32 s35, 0x3e0293ee")
    for r in range(128):
        a(f"v_mul_f32 v{ACC + r}, s35, v{ACC + r}")
    a.label("K1_NOSCALE")
    a("s_lshl_b32 s33, s30, 12")
    a("s_add_u32 s32, s32, s33")
    k = 0
    for tgl in range(4):
        for jj in range(2):
            d = ACC + 16 * (tgl * 2 + jj)
            for sp in range(2):
                t = 24 + 4 * (k % 8)
                k += 1
                pack8(a, t, d + 8 * sp)
                a(f"s_add_u32 s34, s32, {tgl * 8192}")
                a(f"buffer_store_dwordx4 {vr(t)}, v{V_L16}, {sr(S_WS)}, s34 offen offset:{(2 * jj + sp) * 1024}")
    a("s_cbranch_vccz K1_FIN")
    a(f"s_add_u32 s{S_MT}, s{S_MT}, 4")
    a(f"s_mov_b32 s{S_XOFF}, s{S_XNXT}")
    a("s_mov_b64 vcc, 0")
    a("s_branch K1_AGAIN")

    a.label("K1_EPIV")
    a("s_lshl_b32 s33, s30, 11")
    a("s_add_u32 s32, s32, s33")
    k = 0
    for tgl in range(4):
        for jj in range(2):
            d = ACC + 16 * (tgl * 2 + jj)
            for sp in range(2):
                t = 24 + 4 * (k % 8)
                k += 1
                pack8(a, t, d + 8 * sp)
                a(f"s_add_u32 s34, s32, {tgl * 8192 + sp * 4096}")
                a(f"buffer_store_dwordx4 {vr(t)}, v{V_L16}, {sr(S_WS)}, s34 offen offset:{jj * 1024}")
    a("s_cbranch_vccz K1_FIN")
    a(f"s_add_u32 s{S_MT}, s{S_MT}, 4")
    a(f"s_mov_b32 s{S_XOFF}, s{S_XNXT}")
    a("s_mov_b64 vcc, 0")
    a("s_branch K1_AGAIN")
    a.label("K1_FIN")
    stamp_end(a)
    a("s_endpgm")

    a.label("K1_EPIB")
    a("s_waitcnt lgkmcnt(0)")
    a("s_barrier")
    a(f"s_lshr_b32 s30, s{S_WAVE}, 1")
    a(f"s_and_b32 s31, s{S_WAVE}, 1")
    a(f"s_mov_b32 s33, 0x{LOG2E:x}")
    a("s_cmp_eq_u32 s30, 1")
    a("s_cbranch_scc1 K1_BV")
    a("s_cmp_eq_u32 s30, 2")
    a("s_cbranch_scc1 K1_BGATE")
    a(f"v_lshrrev_b32 v{T}, 5, v{lane}")
    a(f"v_lshlrev_b32 v{T}, 7, v{T}")
    a(f"v_and_b32 v{T + 1}, 15, v{lane}")
    a(f"v_lshl_add_u32 v{T}, v{T + 1}, 1, v{T}")
    a(f"v_bfe_u32 v{T + 1}, v{lane}, 4, 1")
    a(f"v_mul_u32_u24 v{T + 1}, 0x8000, v{T + 1}")
    a(f"v_lshl_or_b32 v{T + 1}, v{T + 1}, 16, v{T + 1}")
    a(f"v_and_b32 v{T + 2}, 31, v{lane}")
    a(f"v_lshlrev_b32 v{T + 2}, 6, v{T + 2}")
    a(f"v_lshrrev_b32 v{T + 3}, 5, v{lane}")
    a(f"v_lshl_add_u32 v{T + 2}, v{T + 3}, 3, v{T + 2}")
    a("s_lshl_b32 s32, s31, 13")
    a(f"v_add_u32 v{T + 2}, s32, v{T + 2}")
    WP = 60
    XF = 88
    DD = 64
    PP = 80
    for jj in range(2):
        for sp in range(2):
            hl = 2 * jj + sp
            a(f"s_lshl_b32 s34, s{S_NL}, 2")
            a(f"s_add_u32 s34, s34, {hl}")
            for q in range(4):
                a(f"v_lshl_or_b32 v{WP + q}, v{PH + 8 * hl + 2 * q + 1}, 16, v{PH + 8 * hl + 2 * q}")
                a(f"v_xor_b32 v{WP + q}, v{WP + q}, v{T + 1}")
            for tgl in range(4):
                d = ACC + 16 * (tgl * 2 + jj)
                pack8(a, XF, d + 8 * sp)
                a("s_nop 1")
                mfma(a, DD, WP, XF, "0")
                a("s_nop 15")
                for r in range(16):
                    bf16_round(a, DD + r, DD + r)
                softmax8(a, DD, PP, T + 4)
                softmax8(a, DD + 8, PP + 4, T + 4)
                a("s_cmp_eq_u32 s30, 3")
                a(f"s_cbranch_scc1 K1_BQ{hl}_{tgl}")
                for g in range(4):
                    a(f"ds_write_b64 v{T + 2}, {vr(PP + 2 * g, 2)} offset:{hl * 16384 + tgl * 2048 + g * 16}")
                a(f"s_branch K1_BQD{hl}_{tgl}")
                a.label(f"K1_BQ{hl}_{tgl}")
                a("s_lshl_b32 s36, s34, 6")
                a(f"s_lshl_b32 s37, s{S_MT}, 3")
                a("s_add_u32 s36, s36, s37")
                a("s_lshl_b32 s37, s31, 2")
                a("s_add_u32 s36, s36, s37")
                a(f"s_add_u32 s36, s36, {tgl}")
                a("s_lshl_b32 s36, s36, 11")
                a(f"s_add_u32 s36, s36, {WS_PQ}")
                a(f"buffer_store_dwordx4 {vr(PP)}, v{V_L16}, {sr(S_WS)}, s36 offen")
                a(f"buffer_store_dwordx4 {vr(PP + 4)}, v{V_L16}, {sr(S_WS)}, s36 offen offset:1024")
                a("s_nop 1")
                a.label(f"K1_BQD{hl}_{tgl}")
    a("s_branch K1_BIDLE")
    a.label("K1_BGATE")
    GX = 64; GW = 128; GS = 136
    a(f"buffer_load_dwordx4 {vr(T)}, v{V_L16}, {sr(64)}, 0 offen")
    a(f"s_lshl_b32 s34, s{S_MT}, 8")
    a(f"s_lshl_b32 s35, s{S_NL}, 5")
    a("s_add_u32 s34, s34, s35")
    a("s_lshl_b32 s35, s31, 4")
    a("s_add_u32 s34, s34, s35")
    a("s_lshl_b32 s35, s34, 10")
    for i in range(16):
        a(f"s_add_u32 s36, s35, {i * 1024}")
        a(f"buffer_load_dwordx4 {vr(GX + 4 * i)}, v{V_L16}, {sr(S_X)}, s36 offen")
    a("s_lshl_b32 s34, s34, 2")
    a(f"s_add_u32 s34, s34, {WS_G}")
    a(f"v_mov_b32 v{GS + 2}, 0")
    a(f"v_lshlrev_b32 v{GS + 5}, 8, v{V_LANE}")
    a(f"s_mov_b32 s36, {74 << 20}")
    for o in range(8):
        a(f"buffer_store_dword v{GS + 2}, v{GS + 5}, {sr(S_WS)}, s36 offen offset:{4 * o}")
    a(f"buffer_store_dword v{GS + 2}, v{GS + 5}, {sr(S_WS)}, s36 offen offset:128")
    a("s_waitcnt vmcnt(25)")
    for q in range(4):
        a(f"v_lshlrev_b32 v{GW + 2 * q}, 16, v{T + q}")
        a(f"v_and_b32 v{GW + 2 * q + 1}, 0xffff0000, v{T + q}")
    a("s_waitcnt vmcnt(0)")
    for i in range(16):
        for q in range(4):
            a(f"v_lshlrev_b32 v{T + 2 * q}, 16, v{GX + 4 * i + q}")
            a(f"v_and_b32 v{T + 2 * q + 1}, 0xffff0000, v{GX + 4 * i + q}")
        for e in range(8):
            a(f"v_mul_f32 v{T + e}, v{T + e}, v{GW + e}")
        for e in range(8):
            bf16_round(a, T + e, T + e)
        a(f"v_add_f32 v{GS}, v{T}, v{T + 1}")
        for e in range(2, 8):
            a(f"v_add_f32 v{GS}, v{GS}, v{T + e}")
        for sh in (8, 4, 2, 1):
            a("s_nop 1")
            a(f"v_add_f32_dpp v{GS}, v{GS}, v{GS} row_ror:{sh} row_mask:0xf bank_mask:0xf")
        a("s_nop 1")
        for r in range(4):
            a(f"v_readlane_b32 s{36 + r}, v{GS}, {16 * r}")
        a("s_nop 1")
        a(f"v_mov_b32 v{GS + 1}, s36")
        for r in range(1, 4):
            a(f"v_add_f32 v{GS + 1}, s{36 + r}, v{GS + 1}")
        bf16_round(a, GS + 1, GS + 1)
        a(f"v_mul_f32 v{GS + 1}, 0xbfb8aa3b, v{GS + 1}")
        a(f"v_exp_f32 v{GS + 1}, v{GS + 1}")
        a("s_nop 0")
        a(f"v_add_f32 v{GS + 1}, 1.0, v{GS + 1}")
        a(f"v_rcp_f32 v{GS + 1}, v{GS + 1}")
        a("s_nop 0")
        bf16_round(a, GS + 3 + (i & 1), GS + 1)
        a(f"buffer_store_dword v{GS + 3 + (i & 1)}, v{GS + 2}, {sr(S_WS)}, s34 offen offset:{4 * i}")
    a.label("K1_BIDLE")
    a("s_waitcnt lgkmcnt(0)")
    a("s_barrier")
    stamp_end(a)
    a("s_endpgm")
    a.label("K1_BV")
    PV = 40
    for tgl in range(4):
        for jj in range(2):
            d = ACC + 16 * (tgl * 2 + jj)
            for ks in range(2):
                pack8(a, PV + ((tgl * 2 + jj) * 2 + ks) * 4, d + 8 * ks)
    a(f"v_lshrrev_b32 v{T}, 5, v{lane}")
    a(f"v_bfe_u32 v{T + 1}, v{lane}, 2, 2")
    a(f"v_lshl_add_u32 v{T}, v{T}, 2, v{T + 1}")
    a(f"v_lshlrev_b32 v{T}, 6, v{T}")
    a(f"v_bfe_u32 v{T + 1}, v{lane}, 4, 1")
    a(f"v_lshl_add_u32 v{T}, v{T + 1}, 5, v{T}")
    a(f"v_and_b32 v{T + 2}, 3, v{lane}")
    a(f"v_lshl_add_u32 v{T}, v{T + 2}, 3, v{T}")
    a("s_lshl_b32 s32, s31, 13")
    a(f"v_add_u32 v{T}, s32, v{T}")
    a(f"v_cmp_eq_u32 s[60:61], 1, v{T + 1}")
    a(f"v_cmp_eq_u32 s[62:63], 0, v{T + 1}")
    a(f"v_mov_b32 v{T + 3}, 0x3f803f80")
    a("s_barrier")
    KV = 128
    AFS = (104, 112)
    BFS = (108, 116)
    steps = [(hl, tgl, ks) for hl in range(4) for tgl in range(4) for ks in range(2)]

    def rd(n):
        hl, tgl, ks = steps[n]
        for g in range(2):
            a(f"ds_read_b64_tr_b16 {vr(AFS[n & 1] + 2 * g, 2)}, v{T} offset:{hl * 16384 + (32 * tgl + 16 * ks + 8 * g) * 64}")
    a(f"s_lshl_b32 s34, s{S_MT}, 1")
    a("s_add_u32 s34, s34, s31")
    a("s_lshl_b32 s34, s34, 5")
    a(f"s_lshl_b32 s35, s{S_NL}, 2")
    a("s_add_u32 s34, s34, s35")
    a("s_lshl_b32 s34, s34, 12")
    a(f"s_add_u32 s34, s34, {WS_KVP}")
    rd(0)
    for n, (hl, tgl, ks) in enumerate(steps):
        jj, sp = divmod(hl, 2)
        msk = "s[60:61]" if sp == 0 else "s[62:63]"
        if n + 1 < 32:
            rd(n + 1)
        src = PV + ((tgl * 2 + jj) * 2 + ks) * 4
        for q in range(4):
            a(f"v_cndmask_b32 v{BFS[n & 1] + q}, v{src + q}, v{T + 3}, {msk}")
        a(f"s_waitcnt lgkmcnt({2 if n + 1 < 32 else 0})")
        a("s_nop 1")
        mfma(a, KV + 16 * hl, AFS[n & 1], BFS[n & 1], "0" if n % 8 == 0 else None)
        a("s_nop 3")
        if n % 8 == 2 and hl > 0 or n == 31:
            for h2 in ([hl - 1] if n != 31 else [3]):
                if n == 31:
                    a("s_nop 15")
                a(f"s_add_u32 s35, s34, {h2 * 4096}")
                for q in range(4):
                    a(f"buffer_store_dwordx4 {vr(KV + 16 * h2 + 4 * q)}, v{V_L16}, {sr(S_WS)}, s35 offen offset:{q * 1024}")
    stamp_end(a)
    a.label("K1_EXIT")
    a("s_endpgm")
    kernel_desc(a, L)
```
